```python
import torch

def _softmax(x, axis=-1):
    return torch.softmax(x, dim=axis)
def _gelu(x):
    return torch.nn.functional.gelu(x, approximate="tanh")
def _silu(x):
    return torch.nn.functional.silu(x)
def _sigmoid(x):
    return torch.sigmoid(x)
def _layernorm(x, axis=-1, eps=1e-5):
    m = x.mean(dim=axis, keepdim=True)
    v = x.var(dim=axis, keepdim=True, unbiased=False)
    return (x - m) / torch.sqrt(v + eps)
def _scatter_add(tgt, idx, src, axis=0):
    return tgt.clone().index_add_(axis, idx, src)
def _segment_sum(src, seg, n):
    out = torch.zeros((n,) + src.shape[1:], dtype=src.dtype)
    return out.index_add_(0, seg, src)
def _pad(x, pw):
    flat = tuple(v for pair in reversed(pw) for v in pair)
    return torch.nn.functional.pad(x, flat)

kernel_name = 'standalone__softmax_full_causal__prompt'

def setup_inputs():

    _w = (lambda a: (lambda t: t.to(torch.bfloat16) if t.is_floating_point() else t)(torch.as_tensor(a)))
    B, H, S, D = 1, 16, 2048, 256
    return {
        "q": _w((lambda *s: torch.randn(*s, dtype=torch.bfloat16) * 0.8)(B, H, S, D)),
        "k": _w((lambda *s: torch.randn(*s, dtype=torch.bfloat16) * 0.8)(B, H, S, D)),
        "v": _w((lambda *s: torch.randn(*s, dtype=torch.bfloat16) * 0.05)(B, H, S, D)),
    }

def reference(q, k, v):
    B, H, S, D = q.shape[0], q.shape[1], q.shape[2], q.shape[3]
    scale = D ** -0.5
    scores = torch.einsum('bhqd,bhkd->bhqk', q, k) * scale
    qi = torch.reshape(torch.arange(S), (1, 1, S, 1))
    kj = torch.reshape(torch.arange(S), (1, 1, 1, S))
    causal_bias = (lambda x, dt: x.to(dt))(kj > qi, scores.dtype) * (-1e9)
    attn = _softmax(scores + causal_bias, axis=-1)
    return torch.einsum('bhqk,bhkd->bhqd', attn, v)
```

```python
import sys, struct, math

OUT = sys.argv[1] if len(sys.argv) > 1 else "standalone__softmax_full_causal__prompt.s"
OPT = dict(a.split("=") for a in sys.argv[2:])
def opt(name, default):
    return type(default)(OPT.get(name, default))

NAME = "standalone__softmax_full_causal__prompt_kernel"

def f2u(x):
    return struct.unpack("<I", struct.pack("<f", x))[0]

CSCALE = math.log2(math.e) / 16.0
TRAW = 8.0 / CSCALE

V_LANE = 1
V_KA = 2
V_VA = 10
V_DK = 14
V_DV = 22
V_QO = 24
V_WS = 25
V_QROW = 26
V_M = 27; V_MT = 28; V_MC = 29
V_L = 30
V_ALPHA = 34; V_PM = 35; V_TMP = 36; V_NINF = 37; V_THR = 38; V_TMP2 = 39
V_T8 = 40
V_FA = 48; V_FB = 50
V_S = [64, 96]
V_KF = 128; NKF = 8
V_VF = 160; NVF = 10
A_O = 0; A_Q = 128; A_Q2 = 192

S_Q, S_K, S_V, S_O, S_WS, S_DBG = 4, 8, 12, 16, 20, 24
S_W = 28; S_HB = 29; S_C = 30; S_REM = 31; S_KT = 32; S_MSK = 33
S_KOFF = 34; S_VOFF = 35; S_VOFF2 = 36; S_KF = 37; S_VF = 38; S_N1 = 39; S_SEG2 = 40; S_NT = 41
S_RESC = 42; S_PUB = 43; S_M0B = 44; S_OOB = 45; S_MODE = 48; S_QT = 49; S_N = 50; S_PAIR = 51
S_T0 = 52; S_T1 = 53; S_T2 = 54; S_T3 = 55; S_WSOFF = 46; S_QOFF = 47
S_MK = 56
S_TSMALL = 64

DKD = opt("dk", 4)
DVD = opt("dv", 6)
BARG = opt("barg", 59)
NODMA = opt("nodma", 0)

class I:
    __slots__ = ("text", "kind", "rd", "wr", "cost", "dsid", "need", "srcc")
    def __init__(self, text, kind, rd=(), wr=(), cost=1.0, dsid=None, need=(), srcc=()):
        self.text = text; self.kind = kind; self.rd = set(rd); self.wr = set(wr)
        self.cost = cost; self.dsid = dsid; self.need = tuple(need); self.srcc = set(srcc)

def R(p, b, n=1):
    return [f"{p}{b+i}" for i in range(n)]
def rs(p, b, n):
    return f"{p}[{b}:{b+n-1}]" if n > 1 else f"{p}{b}"

_lab = [0]
def newlab(s):
    _lab[0] += 1
    return f"L_{s}_{_lab[0]}"

def valu(text, rd, wr, cost=1.0): return I(text, "valu", rd, wr, cost)
def trans(text, rd, wr): return I(text, "trans", rd, wr, 2.0)
def salu(text, cost=0.5): return I(text, "salu", (), (), cost)
def label(l): return I(l + ":", "label", cost=0.0)
def raw(text, kind="other", cost=1.0): return I(text, kind, cost=cost)

_ds = [0]
def ds_k(frag, c, kb, slot):
    _ds[0] += 1
    d = V_KF + 4 * frag
    off = slot * 32768 + kb * 16384 + (c >> 3) * 256
    return I(f"ds_read_b128 {rs('v', d, 4)}, v{V_KA + (c & 7)} offset:{off}", "ds", [f"v{V_KA + (c & 7)}"], R("v", d, 4), 1.0, dsid=_ds[0])
def ds_v(frag, kc, db, half, slot):
    _ds[0] += 1
    d = V_VF + 4 * frag + 2 * half
    off = slot * 32768 + kc * 8192 + half * 4096 + (db >> 2) * 256
    return I(f"ds_read_b64_tr_b16 {rs('v', d, 2)}, v{V_VA + (db & 3)} offset:{off}", "ds", [f"v{V_VA + (db & 3)}"], R("v", d, 2), 1.0, dsid=_ds[0])

def mfma_qk(p, kb, c, frag, need):
    s = V_S[p] + 16 * kb
    a = V_KF + 4 * frag
    q = A_Q + 4 * c
    cc = "0" if c == 0 else rs("v", s, 16)
    rd = R("v", a, 4) + R("a", q, 4)
    return I(f"v_mfma_f32_32x32x16_bf16 {rs('v', s, 16)}, {rs('v', a, 4)}, {rs('a', q, 4)}, {cc}", "mfma",
             rd, R("v", s, 16), 2.0, need=need, srcc=([] if c == 0 else R("v", s, 16)))
def mfma_pv(p, kc, db, frag, need):
    pb = V_S[p] + 16 * (kc >> 1) + 8 * (kc & 1)
    a = V_VF + 4 * frag
    o = A_O + 16 * db
    return I(f"v_mfma_f32_32x32x16_bf16 {rs('a', o, 16)}, {rs('v', a, 4)}, {rs('v', pb, 4)}, {rs('a', o, 16)}", "mfma",
             R("v", a, 4) + R("v", pb, 4), R("a", o, 16), 2.0, need=need, srcc=R("a", o, 16))

def echain(p, kb):
    s = V_S[p] + 16 * kb
    out = []
    def fma(i): return valu(f"v_fma_f32 v{s+i}, v{s+i}, s{S_C}, -v{V_MC}", [f"v{s+i}", f"v{V_MC}"], [f"v{s+i}"])
    def ex(i): return trans(f"v_exp_f32 v{s+i}, v{s+i}", [f"v{s+i}"], [f"v{s+i}"])
    def add(i):
        l = V_L + (i & 3)
        return valu(f"v_add_f32 v{l}, v{l}, v{s+i}", [f"v{l}", f"v{s+i}"], [f"v{l}"])
    def pk(i):
        d = s + 8 * (i >> 3) + ((i & 7) >> 1)
        return valu(f"v_cvt_pk_bf16_f32 v{d}, v{s+i}, v{s+i+1}", [f"v{s+i}", f"v{s+i+1}"], [f"v{d}"])
    for i in range(19):
        if i < 16: out.append(fma(i))
        if 1 <= i <= 16: out.append(ex(i - 1))
        if 3 <= i <= 18:
            out.append(add(i - 3))
            if (i - 3) & 1: out.append(pk(i - 4))
    return out

def max16(p, kb, first):
    s = V_S[p] + 16 * kb
    out = []
    if first:
        out.append(valu(f"v_max3_f32 v{V_PM}, v{s}, v{s+1}, v{s+2}", R("v", s, 3), [f"v{V_PM}"]))
        i = 3
    else:
        i = 0
    while i + 1 < 16:
        out.append(valu(f"v_max3_f32 v{V_PM}, v{V_PM}, v{s+i}, v{s+i+1}", [f"v{V_PM}", f"v{s+i}", f"v{s+i+1}"], [f"v{V_PM}"]))
        i += 2
    if i < 16:
        out.append(valu(f"v_max_f32 v{V_PM}, v{V_PM}, v{s+i}", [f"v{V_PM}", f"v{s+i}"], [f"v{V_PM}"]))
    return out

def crosshalf_max():
    return [valu(f"v_mov_b32 v{V_TMP}, v{V_PM}", [f"v{V_PM}"], [f"v{V_TMP}"]),
            raw("s_nop 1", "nop", 1.0),
            I(f"v_permlane32_swap_b32 v{V_TMP}, v{V_PM}", "perm", [f"v{V_TMP}", f"v{V_PM}"], [f"v{V_TMP}", f"v{V_PM}"]),
            valu(f"v_max_f32 v{V_PM}, v{V_PM}, v{V_TMP}", [f"v{V_PM}", f"v{V_TMP}"], [f"v{V_PM}"])]

OOL = []

def mask_check(p, kb):
    lm = newlab(f"mask{kb}"); lr = newlab("ret")
    s = V_S[p] + 16 * kb
    t = [f"{lm}:", f"  s_lshl_b32 s{S_T0}, s{S_KT}, 6", f"  v_subrev_u32 v{V_THR}, s{S_T0}, v{V_QROW}"]
    for g in range(4):
        for r4 in range(4):
            r = 4 * g + r4
            ko = 32 * kb + 8 * g + r4
            t.append(f"  v_cmp_gt_i32 s[{S_MK+2*r4}:{S_MK+2*r4+1}], {ko}, v{V_THR}")
        for r4 in range(4):
            r = 4 * g + r4
            t.append(f"  v_cndmask_b32 v{s+r}, v{s+r}, v{V_NINF}, s[{S_MK+2*r4}:{S_MK+2*r4+1}]")
    t.append(f"  s_branch {lr}")
    OOL.extend(t)
    return [salu(f"s_cmp_ge_u32 s{S_KT}, s{S_MSK}"),
            I(f"s_cbranch_scc1 {lm}", "salu", R("v", s, 16), R("v", s, 16), 0.5),
            label(lr)]

def rare_check():
    lm = newlab("rare"); lr = newlab("ret")
    t = [f"{lm}:",
         f"  v_max_f32 v{V_TMP}, v{V_M}, v{V_PM}",
         f"  v_sub_f32 v{V_TMP2}, v{V_M}, v{V_TMP}",
         f"  v_mul_f32 v{V_TMP2}, s{S_C}, v{V_TMP2}",
         f"  v_exp_f32 v{V_ALPHA}, v{V_TMP2}",
         f"  v_mov_b32 v{V_M}, v{V_TMP}",
         f"  v_add_f32 v{V_MT}, {hex(f2u(TRAW))}, v{V_TMP}",
         f"  v_mul_f32 v{V_MC}, s{S_C}, v{V_TMP}"]
    for i in range(4):
        t.append(f"  v_mul_f32 v{V_L+i}, v{V_L+i}, v{V_ALPHA}")
    t += [f"  s_mov_b32 s{S_RESC}, 1", f"  s_branch {lr}"]
    OOL.extend(t)
    return [valu(f"v_cmp_gt_f32 vcc, v{V_PM}, v{V_MT}", [f"v{V_PM}", f"v{V_MT}"], ["vcc"]),
            salu(f"s_cbranch_vccnz {lm}"), label(lr)]

def resc_check():
    lm = newlab("resc"); lr = newlab("ret")
    t = [f"{lm}:", "  s_nop 15", "  s_nop 15"]
    for r0 in range(0, 128, 8):
        for i in range(8): t.append(f"  v_accvgpr_read_b32 v{V_T8+i}, a{A_O+r0+i}")
        for i in range(8): t.append(f"  v_mul_f32 v{V_T8+i}, v{V_T8+i}, v{V_ALPHA}")
        for i in range(8): t.append(f"  v_accvgpr_write_b32 a{A_O+r0+i}, v{V_T8+i}")
    t += [f"  s_mov_b32 s{S_RESC}, 0", "  s_nop 1", f"  s_branch {lr}"]
    OOL.extend(t)
    return [salu(f"s_cmp_lg_u32 s{S_RESC}, 0"), salu(f"s_cbranch_scc1 {lm}"), label(lr)]

def pub_check():
    lm = newlab("pub"); lr = newlab("ret")
    t = [f"{lm}:", f"  s_mov_b32 s{S_PUB}, 0", f"  s_cmp_lg_u32 s{S_W}, 0", f"  s_cbranch_scc1 {lr}",
         f"  v_mov_b32 v{V_TMP2}, 1", f"  v_mov_b32 v{V_THR}, 0",
         f"  s_mov_b64 s[{S_MK}:{S_MK+1}], exec", "  s_mov_b64 exec, 1",
         f"  buffer_store_byte v{V_TMP2}, v{V_THR}, s[{S_DBG}:{S_DBG+3}], s{S_PAIR} offen sc1",
         f"  s_mov_b64 exec, s[{S_MK}:{S_MK+1}]",
         f"  s_branch {lr}"]
    OOL.extend(t)
    return [salu(f"s_cmp_lg_u32 s{S_PUB}, 0"), salu(f"s_cbranch_scc1 {lm}"), label(lr)]

def dma_k(slot):
    g = []
    for q in range(8):
        grp = []
        if q in (0, 4):
            grp.append(salu(f"s_add_u32 m0, s{S_M0B}, {slot*32768 + (q>>2)*4096}"))
            grp.append(raw("s_nop 0", "nop", 0.5))
        if not NODMA:
            grp.append(I(f"buffer_load_dwordx4 v{V_DK+q}, s[{S_K}:{S_K+3}], s{S_KOFF} offen offset:{(q&3)*1024} lds", "vmem", [f"v{V_DK+q}"], [], opt("dmacost", 3.0)))
        g.append(grp)
    g.append([salu(f"s_add_u32 s{S_KF}, s{S_KF}, 1"), salu(f"s_add_u32 s{S_KOFF}, s{S_KOFF}, 0x8000"),
              salu(f"s_cmp_eq_u32 s{S_KF}, s{S_N1}"), salu(f"s_cselect_b32 s{S_KOFF}, s{S_SEG2}, s{S_KOFF}"),
              salu(f"s_cmp_ge_u32 s{S_KF}, s{S_NT}"), salu(f"s_cselect_b32 s{S_KOFF}, s{S_OOB}, s{S_KOFF}")])
    return g
def dma_v(slot):
    g = []
    for q in range(8):
        grp = []
        if q == 0:
            grp.append(salu(f"s_add_u32 s{S_VOFF2}, s{S_VOFF}, 0x1000"))
        if q in (0, 4):
            grp.append(salu(f"s_add_u32 m0, s{S_M0B}, {65536 + slot*32768 + (q>>2)*4096}"))
            grp.append(raw("s_nop 0", "nop", 0.5))
        so = S_VOFF if q < 4 else S_VOFF2
        if not NODMA:
            grp.append(I(f"buffer_load_dwordx4 v{V_DV+(q&1)}, s[{S_V}:{S_V+3}], s{so} offen offset:{(q&3)*1024} lds", "vmem", [f"v{V_DV+(q&1)}"], [], opt("dmacost", 3.0)))
        g.append(grp)
    g.append([salu(f"s_add_u32 s{S_VF}, s{S_VF}, 1"), salu(f"s_add_u32 s{S_VOFF}, s{S_VOFF}, 0x8000"),
              salu(f"s_cmp_eq_u32 s{S_VF}, s{S_N1}"), salu(f"s_cselect_b32 s{S_VOFF}, s{S_SEG2}, s{S_VOFF}"),
              salu(f"s_cmp_ge_u32 s{S_VF}, s{S_NT}"), salu(f"s_cselect_b32 s{S_VOFF}, s{S_OOB}, s{S_VOFF}")])
    return g

def schedule(mfmas, fixed, stream, pre_issued, head=()):
    n = len(mfmas)
    gc = lambda g: sum(x.cost for x in g)
    gaps = [list(fixed.get(i, [])) for i in range(n)]
    total = sum(gc(g) for gl in gaps for g in gl) + sum(gc(it[0]) for it in stream)
    per = total / n
    cum = 0.0
    si = 0
    for i in range(n):
        cum += sum(gc(g) for g in gaps[i])
        ins = []
        while si < len(stream):
            grp, e, lt = stream[si]
            if e > i: break
            c = gc(grp)
            if cum + c / 2 > per * (i + 1) and not (lt is not None and lt <= i) and i != n - 1: break
            ins.append(grp); cum += c; si += 1
        fx = gaps[i]; merged = []
        while fx or ins:
            if fx: merged.extend(fx.pop(0))
            if ins: merged.extend(ins.pop(0))
        gaps[i] = merged
    assert si == len(stream), "stream left over"
    out = list(head)
    issued = list(pre_issued); done = 0
    for i in range(n):
        m = mfmas[i]
        if m.need:
            pos = max(issued.index(d) for d in m.need)
            if pos >= done:
                N = len(issued) - 1 - pos
                out.append(raw(f"s_waitcnt lgkmcnt({min(N,15)})", "wait", 0.5))
                done = len(issued) - min(N, 15)
        out.append(m)
        for x in gaps[i]:
            out.append(x)
            if x.kind == "ds": issued.append(x.dsid)
            if x.kind == "wait0": done = len(issued)
    return out, issued[done:]

def check_hazards(seq, name):
    seq0 = [x for x in seq if x.kind != "label"]
    seq = []
    for x in seq0:
        seq.append(x)
        if x.kind == "nop":
            for _ in range(int(x.text.split()[1])): seq.append(x)
    lastmf = {}; lastvalu = {}; lasttrans = {}; lastsrcc = {}; lastw = {}
    for i, x in enumerate(seq):
        if x.kind == "mfma" and x.text.split()[1].startswith("a["):
            for r in x.rd:
                if 64 <= int(r[1:]) < 128 and r in lastw and not lastw[r].startswith("v_cvt_pk"):
                    print(f"DEP {name}: P reg {r} last written by {lastw[r]} for {x.text}")
        for r in x.wr: lastw[r] = x.text
        isv = x.kind in ("valu", "trans", "perm")
        touch = x.rd | x.wr
        if x.kind == "mfma":
            for r in x.rd:
                if r in lastmf and i - lastmf[r] - 1 < 12: print(f"HAZ {name}: mfma->mfma AB {r} {x.text}")
                if r in lastvalu and i - lastvalu[r] - 1 < 2: print(f"HAZ {name}: valu->mfma {r} {x.text}")
            for r in x.srcc:
                if r in lastvalu and i - lastvalu[r] - 1 < 2: print(f"HAZ {name}: valu->mfma C {r} {x.text}")
            for r in x.wr - x.srcc:
                if r in lastmf and i - lastmf[r] - 1 < 12: print(f"HAZ {name}: mfma WAW {r} {x.text}")
        else:
            for r in touch:
                if r in lastmf and i - lastmf[r] - 1 < 12: print(f"HAZ {name}: mfma->other {r} dist {i-lastmf[r]-1} {x.text}")
            if isv:
                for r in x.wr:
                    if r in lastsrcc and i - lastsrcc[r] - 1 < 7: print(f"HAZ {name}: srcC WAR {r} {x.text}")
            if x.kind == "valu" or x.kind == "perm":
                for r in x.rd:
                    if r in lasttrans and i - lasttrans[r] - 1 < 1: print(f"HAZ {name}: trans->valu {r} {x.text}")
            if x.kind == "perm":
                for r in x.rd:
                    if r in lastvalu and i - lastvalu[r] - 1 < 2: print(f"HAZ {name}: valu->perm {r} {x.text}")
        if x.kind == "mfma":
            for r in x.wr: lastmf[r] = i
            for r in x.srcc: lastsrcc[r] = i
        if isv:
            for r in x.wr:
                lastvalu[r] = i
                if x.kind == "trans": lasttrans[r] = i
                else: lasttrans.pop(r, None)

PRE = [-(k + 1) for k in range(DKD)]

def k_prereads(slot):
    out = []
    for k in range(DKD):
        x = ds_k(k % NKF, k, 0, slot); x.dsid = PRE[k]; out.append(x)
    return out

def spread(groups, g0, step):
    d = {}
    for k, grp in enumerate(groups):
        d.setdefault(g0 + k * step, []).append(grp)
    return d
def addfix(fixed, d):
    for k, v in d.items(): fixed.setdefault(k, []).extend(v)

def barrier_items():
    return [[raw("s_waitcnt vmcnt(0) lgkmcnt(0)", "wait0", 0.5)], [raw("s_barrier", "bar", 1.0)] + pub_check()]

def body(p):
    q = 1 - p
    fixed = {}; mf = []
    kid = {}
    for i in range(32):
        if i < DKD: kid[i] = PRE[i]
        else:
            x = ds_k(i % NKF, i & 15, i >> 4, q); kid[i] = x.dsid
            fixed.setdefault(i - DKD, []).append([x])
    for i in range(32):
        mf.append(mfma_qk(q, i >> 4, i & 15, i % NKF, [kid[i]]))
    for i in range(32):
        kc, db = i >> 3, i & 7
        a = ds_v(i % NVF, kc, db, 0, p); b = ds_v(i % NVF, kc, db, 1, p)
        fixed.setdefault(32 + i - DVD, []).extend([[a], [b]])
        mf.append(mfma_pv(p, kc, db, i % NVF, [a.dsid, b.dsid]))
    dg = dma_k(p) + dma_v(q)
    addfix(fixed, spread(dg, opt("dma0", 0), opt("dmastep", 1) if opt("dmastep", 1) else 1) if opt("dmastep", 1) >= 1 else {})
    addfix(fixed, {BARG: barrier_items()})
    pr = k_prereads(p)
    for k in range(DKD): fixed.setdefault(64 - DKD + k, []).append([pr[k]])
    stream = []
    for x in echain(p, 1): stream.append(([x], 0, 44))
    stream.append((mask_check(q, 0), 19, None))
    for x in max16(q, 0, True): stream.append(([x], 19, None))
    stream.append((mask_check(q, 1), 35, None))
    for x in max16(q, 1, False): stream.append(([x], 35, None))
    stream.append((crosshalf_max(), 35, None))
    stream.append((rare_check(), 35, None))
    stream.append(([salu(f"s_add_u32 s{S_KT}, s{S_KT}, 1")], 35, None))
    for x in echain(q, 0): stream.append(([x], 35, None))
    stream.append(([salu(f"s_sub_u32 s{S_REM}, s{S_REM}, 1")], 35, None))
    seq, left = schedule(mf, fixed, stream, PRE, head=resc_check())
    assert left == PRE or left == [], (left, PRE)
    return seq

def tail(p):
    fixed = {}; mf = []
    head = [raw("s_waitcnt lgkmcnt(0)", "wait", 0.5)] + resc_check()
    pre = []
    for i in range(32):
        kc, db = i >> 3, i & 7
        a = ds_v(i % NVF, kc, db, 0, p); b = ds_v(i % NVF, kc, db, 1, p)
        if i < DVD:
            head.extend([a, b]); pre.extend([a.dsid, b.dsid])
        else:
            fixed.setdefault(i - DVD, []).extend([[a], [b]])
        mf.append(mfma_pv(p, kc, db, i % NVF, [a.dsid, b.dsid]))
    dg = dma_k(p) + dma_v(1 - p)
    addfix(fixed, spread(dg, 0, 1))
    addfix(fixed, {BARG - 32: barrier_items()})
    stream = []
    ec = echain(p, 1)
    for k, x in enumerate(ec): stream.append(([x], 0, 13 if k < 33 else 21))
    seq, left = schedule(mf, fixed, stream, pre, head=head)
    return seq

def prologue(p, initial):
    out = []
    out.append(salu(f"s_lshl_b32 s{S_T0}, s{S_QT}, 7"))
    out.append(salu(f"s_lshl_b32 s{S_T1}, s{S_W}, 5"))
    out.append(salu(f"s_add_u32 s{S_T0}, s{S_T0}, s{S_T1}"))
    out.append(valu(f"v_and_b32 v{V_TMP}, 31, v{V_LANE}", [], [f"v{V_TMP}"]))
    out.append(valu(f"v_lshrrev_b32 v{V_TMP2}, 5, v{V_LANE}", [], [f"v{V_TMP2}"]))
    out.append(valu(f"v_lshlrev_b32 v{V_TMP2}, 2, v{V_TMP2}", [], [f"v{V_TMP2}"]))
    out.append(valu(f"v_sub_u32 v{V_TMP}, v{V_TMP}, v{V_TMP2}", [], [f"v{V_TMP}"]))
    out.append(valu(f"v_add_u32 v{V_QROW}, s{S_T0}, v{V_TMP}", [], [f"v{V_QROW}"]))
    for i in range(4): out.append(valu(f"v_mov_b32 v{V_L+i}, 0", [], [f"v{V_L+i}"]))
    out.append(salu(f"s_mov_b32 s{S_RESC}, 0"))
    out.append(salu(f"s_sub_u32 s{S_REM}, s{S_N}, 1"))
    if initial:
        out.append(raw("s_waitcnt vmcnt(32)", "wait"))
        out.append(raw("s_barrier", "bar"))
    fixed = {}; mf = []; kid = {}; pre = []
    for i in range(32):
        x = ds_k(i % NKF, i & 15, i >> 4, p); kid[i] = x.dsid
        if i < DKD: out.append(x); pre.append(x.dsid)
        else: fixed.setdefault(i - DKD, []).append([x])
        mf.append(mfma_qk(p, i >> 4, i & 15, i % NKF, [kid[i]]))
    stream = [([valu(f"v_accvgpr_write_b32 a{A_O+r}, 0", [], [f"a{A_O+r}"])], 0, None) for r in range(128)]
    seq, left = schedule(mf, fixed, stream, pre, head=out)
    seq.append(raw("s_waitcnt vmcnt(16) lgkmcnt(0)" if initial else "s_waitcnt lgkmcnt(0)", "wait0"))
    seq.append(raw("s_barrier", "bar"))
    seq += k_prereads(1 - p)
    seq.append(raw("s_nop 7", "nop"))
    seq += mask_check(p, 0) + mask_check(p, 1)
    seq += max16(p, 0, True) + max16(p, 1, False) + crosshalf_max()
    seq.append(valu(f"v_mov_b32 v{V_M}, v{V_PM}", [f"v{V_PM}"], [f"v{V_M}"]))
    seq.append(valu(f"v_add_f32 v{V_MT}, {hex(f2u(TRAW))}, v{V_PM}", [f"v{V_PM}"], [f"v{V_MT}"]))
    seq.append(valu(f"v_mul_f32 v{V_MC}, s{S_C}, v{V_PM}", [f"v{V_PM}"], [f"v{V_MC}"]))
    seq.append(salu(f"s_add_u32 s{S_KT}, s{S_KT}, 1"))
    seq += echain(p, 0)
    return seq

def txt(seq):
    return [("" if x.kind == "label" else "  ") + x.text for x in seq]

def lsum_lines():
    return [f"  v_add_f32 v{V_L}, v{V_L}, v{V_L+1}", f"  v_add_f32 v{V_L+2}, v{V_L+2}, v{V_L+3}",
            f"  v_add_f32 v{V_L}, v{V_L}, v{V_L+2}"]
def crosshalf_add(reg):
    return [f"  v_mov_b32 v{V_TMP}, v{reg}", "  s_nop 1", f"  v_permlane32_swap_b32 v{V_TMP}, v{reg}",
            f"  v_add_f32 v{reg}, v{reg}, v{V_TMP}"]

def store_out(merge):
    t = [f"  s_lshl_b32 s{S_T0}, s{S_QT}, 16", f"  s_add_u32 s{S_T0}, s{S_T0}, s{S_HB}"]
    for db in range(8):
        for pr in range(2):
            tb = 200 + 16 * ((db * 2 + pr) & 1)
            r0 = 16 * db + 8 * pr
            if merge:
                k = (db * 2 + pr) * 2 + 2
                t.append(f"  s_waitcnt vmcnt({32 - k + min(db*2+pr, 63)})" if False else f"  s_waitcnt vmcnt({min(63, 32 - k + (db*2+pr))})")
            for i in range(8): t.append(f"  v_accvgpr_read_b32 v{tb+i}, a{A_O+r0+i}")
            for i in range(0, 8, 2):
                t.append(f"  v_pk_mul_f32 v[{tb+i}:{tb+i+1}], v[{tb+i}:{tb+i+1}], v[{V_FA}:{V_FA+1}]")
            if merge:
                for i in range(0, 8, 2):
                    t.append(f"  v_pk_fma_f32 v[{tb+i}:{tb+i+1}], v[{64+r0+i}:{64+r0+i+1}], v[{V_FB}:{V_FB+1}], v[{tb+i}:{tb+i+1}]")
            for i in range(4):
                t.append(f"  v_cvt_pk_bf16_f32 v{tb+8+i}, v{tb+2*i}, v{tb+2*i+1}")
            t.append("  s_nop 1")
            t.append(f"  v_permlane32_swap_b32 v{tb+8}, v{tb+10}")
            t.append(f"  v_permlane32_swap_b32 v{tb+9}, v{tb+11}")
            t.append(f"  buffer_store_dwordx4 v[{tb+8}:{tb+11}], v{V_QO}, s[{S_O}:{S_O+3}], s{S_T0} offen offset:{64*db+32*pr}")
    return t

def main():
    L = []
    L += ["; Kernarg layout (48 bytes): q, k, v, out, debug, ws pointers (bf16 tensors 1x16x2048x256)",
          "; causal flash attention fwd: 256 WGs x 4 waves, 128 q rows per WG, split-K pairs for causal balance",
          "; @launch grid=(256,1,1) block=(256,1,1) lds=131072",
          '.amdgcn_target "amdgcn-amd-amdhsa--gfx950"', ".text", f".globl {NAME}", ".p2align 8",
          f".type {NAME},@function", f"{NAME}:"]
    a = L.append
    a("  s_cmp_ge_u32 s2, 256"); a("  s_cbranch_scc1 L_end")
    a("  s_load_dwordx4 s[80:83], s[0:1], 0"); a("  s_load_dwordx4 s[84:87], s[0:1], 16"); a("  s_load_dwordx4 s[88:91], s[0:1], 32")
    a(f"  v_and_b32 v{V_LANE}, 63, v0"); a(f"  v_lshrrev_b32 v{V_TMP}, 6, v0"); a("  s_nop 0")
    a(f"  v_readfirstlane_b32 s{S_W}, v{V_TMP}")
    a(f"  s_and_b32 s{S_T0}, s2, 7"); a(f"  s_lshr_b32 s{S_T1}, s2, 3"); a(f"  s_and_b32 s{S_T2}, s{S_T1}, 1")
    a(f"  s_lshl_b32 s{S_T0}, s{S_T0}, 1"); a(f"  s_or_b32 s{S_T0}, s{S_T0}, s{S_T2}")
    a(f"  s_lshr_b32 s{S_T1}, s{S_T1}, 1")
    a(f"  s_lshl_b32 s{S_HB}, s{S_T0}, 20")
    a(f"  s_mov_b32 s{S_C}, {hex(f2u(CSCALE))}")
    a(f"  s_mov_b32 s{S_OOB}, 0x7ff00000")
    a(f"  s_mov_b32 s{S_NT}, 17"); a(f"  s_mov_b32 s{S_PUB}, 0"); a(f"  s_mov_b32 s{S_KF}, 0"); a(f"  s_mov_b32 s{S_VF}, 0")
    a(f"  s_mov_b32 s{S_SEG2}, s{S_HB}")
    a(f"  s_lshl_b32 s{S_M0B}, s{S_W}, 13")
    a(f"  s_cmp_lt_u32 s{S_T1}, 8"); a("  s_cbranch_scc0 L_typeA")
    a(f"  s_mov_b32 s{S_TSMALL}, s{S_T1}")
    a(f"  s_sub_u32 s{S_QT}, 15, s{S_T1}")
    a(f"  s_lshl_b32 s{S_T2}, s{S_T1}, 1"); a(f"  s_sub_u32 s{S_N1}, 15, s{S_T2}")
    a(f"  s_mov_b32 s{S_N}, s{S_N1}"); a(f"  s_mov_b32 s{S_KT}, 0"); a(f"  s_mov_b32 s{S_MSK}, 1000"); a(f"  s_mov_b32 s{S_MODE}, 0")
    a(f"  s_lshl_b32 s{S_T3}, s{S_T1}, 16"); a(f"  s_add_u32 s{S_T3}, s{S_T3}, s{S_HB}")
    a("  s_branch L_common")
    a("L_typeA:")
    a(f"  s_mov_b32 s{S_QT}, s{S_T1}")
    a(f"  s_sub_u32 s{S_TSMALL}, 15, s{S_T1}")
    a(f"  s_lshl_b32 s{S_T2}, s{S_TSMALL}, 1"); a(f"  s_sub_u32 s{S_KT}, 15, s{S_T2}")
    a(f"  s_mov_b32 s{S_N1}, 17"); a(f"  s_mov_b32 s{S_N}, 17"); a(f"  s_lshl_b32 s{S_MSK}, s{S_T1}, 1"); a(f"  s_mov_b32 s{S_MODE}, 2")
    a(f"  s_mov_b32 s{S_T3}, s{S_OOB}")
    a("L_common:")
    a(f"  s_lshl_b32 s{S_PAIR}, s{S_T0}, 3"); a(f"  s_add_u32 s{S_PAIR}, s{S_PAIR}, s{S_TSMALL}")
    a(f"  s_mul_i32 s{S_WSOFF}, s{S_PAIR}, 0x21000")
    a(f"  s_lshl_b32 s{S_KOFF}, s{S_KT}, 15"); a(f"  s_add_u32 s{S_KOFF}, s{S_KOFF}, s{S_HB}"); a(f"  s_mov_b32 s{S_VOFF}, s{S_KOFF}")
    a(f"  s_lshl_b32 s{S_QOFF}, s{S_QT}, 16"); a(f"  s_add_u32 s{S_QOFF}, s{S_QOFF}, s{S_HB}")
    l = V_LANE; t0 = V_T8; t1 = V_T8 + 1; t2 = V_T8 + 2; t3 = V_T8 + 3; t4 = V_T8 + 4
    a(f"  v_and_b32 v{t0}, 31, v{l}")
    a(f"  v_lshrrev_b32 v{t1}, 5, v{l}")
    a(f"  v_and_b32 v{t2}, 15, v{l}")
    for c7 in range(8):
        a(f"  v_add_u32 v{t3}, {2*c7}, v{t1}"); a(f"  v_xor_b32 v{t3}, v{t3}, v{t2}"); a(f"  v_lshlrev_b32 v{t3}, 4, v{t3}")
        a(f"  v_lshl_add_u32 v{V_KA+c7}, v{t0}, 9, v{t3}")
    a(f"  v_xor_b32 v{t4}, v{t0}, v{t1}")
    for q in range(8):
        a(f"  v_xor_b32 v{t3}, {2*q}, v{t4}"); a(f"  v_lshlrev_b32 v{t3}, 4, v{t3}")
        a(f"  v_lshl_add_u32 v{t3}, v{t1}, 9, v{t3}"); a(f"  v_add_u32 v{t3}, {(q>>2)*4096}, v{t3}")
        a(f"  v_add_u32 v{V_DK+q}, s{S_M0B}, v{t3}")
    for e in range(2):
        a(f"  v_add_u32 v{t3}, {2*e}, v{t1}"); a(f"  v_lshlrev_b32 v{t3}, 2, v{t3}"); a(f"  v_xor_b32 v{t3}, v{t3}, v{t0}")
        a(f"  v_lshlrev_b32 v{t3}, 4, v{t3}"); a(f"  v_lshl_add_u32 v{t3}, v{t1}, 9, v{t3}"); a(f"  v_add_u32 v{V_DV+e}, s{S_M0B}, v{t3}")
    a(f"  v_lshrrev_b32 v{t3}, 2, v{t2}")
    a(f"  v_lshl_add_u32 v{t4}, v{t1}, 2, v{t3}")
    a(f"  v_lshlrev_b32 v{t4}, 9, v{t4}")
    a(f"  v_bfe_u32 v{t0}, v{l}, 4, 1"); a(f"  v_lshl_add_u32 v{t4}, v{t0}, 5, v{t4}")
    a(f"  v_and_b32 v{t0}, 3, v{l}"); a(f"  v_lshl_add_u32 v{t4}, v{t0}, 3, v{t4}")
    a(f"  v_add_u32 v{t4}, 0x10000, v{t4}")
    for dbl in range(4):
        a(f"  v_xor_b32 v{t0}, {dbl}, v{t3}"); a(f"  v_lshl_add_u32 v{V_VA+dbl}, v{t0}, 6, v{t4}")
    a(f"  v_and_b32 v{t0}, 31, v{l}"); a(f"  v_lshlrev_b32 v{t0}, 9, v{t0}"); a(f"  v_lshl_add_u32 v{t0}, v{t1}, 4, v{t0}")
    a(f"  s_lshl_b32 s{S_T1}, s{S_W}, 14"); a(f"  v_add_u32 v{V_QO}, s{S_T1}, v{t0}")
    a(f"  v_lshlrev_b32 v{V_WS}, 4, v{l}")
    a(f"  v_mov_b32 v{V_NINF}, 0xff800000")
    a("  s_waitcnt lgkmcnt(0)")
    for (srd, lo, n) in ((S_Q, 80, 0x1000000), (S_K, 82, 0x1000000), (S_V, 84, 0x1000000), (S_O, 86, 0x1000000), (S_DBG, 88, 256), (S_WS, 90, 0x10000000)):
        a(f"  s_mov_b32 s{srd}, s{lo}"); a(f"  s_and_b32 s{srd+1}, s{lo+1}, 0xffff"); a(f"  s_mov_b32 s{srd+2}, {hex(n)}"); a(f"  s_mov_b32 s{srd+3}, 0x00020000")
    for grp in dma_k(0): L += txt(grp)
    for c in range(16): a(f"  buffer_load_dwordx4 a[{A_Q+4*c}:{A_Q+4*c+3}], v{V_QO}, s[{S_Q}:{S_Q+3}], s{S_QOFF} offen offset:{32*c}")
    for grp in dma_v(0): L += txt(grp)
    for grp in dma_k(1): L += txt(grp)
    for c in range(16): a(f"  buffer_load_dwordx4 a[{A_Q2+4*c}:{A_Q2+4*c+3}], v{V_QO}, s[{S_Q}:{S_Q+3}], s{S_T3} offen offset:{32*c}")
    pro_i = prologue(0, True); check_hazards(pro_i, "pro_i")
    L += txt(pro_i)
    a("L_after_pro0:")
    a(f"  s_cmp_eq_u32 s{S_REM}, 0"); a("  s_cbranch_scc1 L_tail0")
    b0 = body(0); b1 = body(1)
    check_hazards(pro_i + b0 + b1 + b0, "loop")
    a("L_body0:"); L += txt(b0)
    a("L_after_pro1:")
    a(f"  s_cmp_eq_u32 s{S_REM}, 0"); a("  s_cbranch_scc1 L_tail1")
    a("L_body1:"); L += txt(b1)
    a(f"  s_cmp_lg_u32 s{S_REM}, 0"); a("  s_cbranch_scc1 L_body0")
    t0s = tail(0); t1s = tail(1)
    check_hazards(b1 + t0s, "tail0"); check_hazards(b0 + t1s, "tail1")
    a("L_tail0:"); L += txt(t0s); a("  s_branch L_epi")
    a("L_tail1:"); L += txt(t1s)
    a("L_epi:")
    a("  s_nop 15"); a("  s_nop 15")
    L += lsum_lines()
    a(f"  s_cmp_eq_u32 s{S_MODE}, 1"); a("  s_cbranch_scc1 L_final")
    a(f"  s_lshl_b32 s{S_T0}, s{S_W}, 15"); a(f"  s_add_u32 s{S_T0}, s{S_T0}, s{S_WSOFF}")
    a(f"  s_lshl_b32 s{S_T1}, s{S_W}, 9"); a(f"  s_add_u32 s{S_T1}, s{S_T1}, s{S_WSOFF}"); a(f"  s_add_u32 s{S_T1}, s{S_T1}, 0x20000")
    a(f"  v_lshlrev_b32 v{V_TMP2}, 3, v{V_LANE}")
    a(f"  s_cmp_eq_u32 s{S_MODE}, 2"); a("  s_cbranch_scc1 L_merge")
    for g in range(32):
        if g and g % 4 == 0: a(f"  s_add_u32 s{S_T0}, s{S_T0}, 0x1000")
        a(f"  buffer_store_dwordx4 a[{A_O+4*g}:{A_O+4*g+3}], v{V_WS}, s[{S_WS}:{S_WS+3}], s{S_T0} offen offset:{(g&3)*1024} sc1")
    a(f"  v_mov_b32 v{V_T8}, v{V_M}"); a(f"  v_mov_b32 v{V_T8+1}, v{V_L}")
    a(f"  buffer_store_dwordx2 v[{V_T8}:{V_T8+1}], v{V_TMP2}, s[{S_WS}:{S_WS+3}], s{S_T1} offen sc1")
    a(f"  s_mov_b32 s{S_PUB}, 1")
    for i in range(64): a(f"  v_accvgpr_mov_b32 a{A_Q+i}, a{A_Q2+i}")
    a(f"  s_mov_b32 s{S_QT}, s{S_TSMALL}"); a(f"  s_lshl_b32 s{S_MSK}, s{S_TSMALL}, 1"); a(f"  s_add_u32 s{S_N}, s{S_MSK}, 2")
    a(f"  s_mov_b32 s{S_KT}, 0"); a(f"  s_mov_b32 s{S_MODE}, 1")
    a(f"  s_and_b32 s{S_T0}, s{S_N1}, 1"); a(f"  s_cmp_eq_u32 s{S_T0}, 1"); a("  s_cbranch_scc1 L_pro1")
    p0 = prologue(0, False); check_hazards(p0 + b0, "pro0")
    L += txt(p0); a("  s_branch L_after_pro0")
    a("L_pro1:")
    p1 = prologue(1, False); check_hazards(p1 + b1, "pro1")
    L += txt(p1); a("  s_branch L_after_pro1")
    a("L_final:")
    L += crosshalf_add(V_L)
    a(f"  v_rcp_f32 v{V_FA}, v{V_L}"); a("  s_nop 0"); a(f"  v_mov_b32 v{V_FA+1}, v{V_FA}")
    L += store_out(False)
    a("  s_endpgm")
    a("L_merge:")
    a(f"  v_mov_b32 v{V_THR}, 0")
    a(f"  s_mov_b32 s{S_T2}, 0x400000")
    a("L_poll:")
    a(f"  buffer_load_ubyte v{V_TMP}, v{V_THR}, s[{S_DBG}:{S_DBG+3}], s{S_PAIR} offen sc1")
    a("  s_waitcnt vmcnt(0)")
    a(f"  v_cmp_eq_u32 vcc, 0, v{V_TMP}")
    a("  s_cbranch_vccz L_go")
    a("  s_sleep 2")
    a(f"  s_sub_u32 s{S_T2}, s{S_T2}, 1")
    a(f"  s_cmp_lg_u32 s{S_T2}, 0")
    a("  s_cbranch_scc1 L_poll")
    a("L_go:")
    a("  buffer_inv sc1")
    a(f"  buffer_load_dwordx2 v[{V_T8}:{V_T8+1}], v{V_TMP2}, s[{S_WS}:{S_WS+3}], s{S_T1} offen sc1")
    for g in range(32):
        if g and g % 4 == 0: a(f"  s_add_u32 s{S_T0}, s{S_T0}, 0x1000")
        a(f"  buffer_load_dwordx4 v[{64+4*g}:{64+4*g+3}], v{V_WS}, s[{S_WS}:{S_WS+3}], s{S_T0} offen offset:{(g&3)*1024} sc1")
    a("  s_waitcnt vmcnt(32)")
    a(f"  v_max_f32 v{V_TMP}, v{V_M}, v{V_T8}")
    a(f"  v_sub_f32 v{V_M}, v{V_M}, v{V_TMP}"); a(f"  v_sub_f32 v{V_T8}, v{V_T8}, v{V_TMP}")
    a(f"  v_mul_f32 v{V_M}, s{S_C}, v{V_M}"); a(f"  v_mul_f32 v{V_T8}, s{S_C}, v{V_T8}")
    a(f"  v_exp_f32 v{V_M}, v{V_M}"); a(f"  v_exp_f32 v{V_T8}, v{V_T8}"); a("  s_nop 0")
    a(f"  v_mul_f32 v{V_L}, v{V_L}, v{V_M}"); a(f"  v_fma_f32 v{V_L}, v{V_T8+1}, v{V_T8}, v{V_L}")
    L += crosshalf_add(V_L)
    a(f"  v_rcp_f32 v{V_L}, v{V_L}"); a("  s_nop 0")
    a(f"  v_mul_f32 v{V_FA}, v{V_M}, v{V_L}"); a(f"  v_mul_f32 v{V_FB}, v{V_T8}, v{V_L}")
    a(f"  v_mov_b32 v{V_FA+1}, v{V_FA}"); a(f"  v_mov_b32 v{V_FB+1}, v{V_FB}")
    L += store_out(True)
    a("L_end:")
    a("  s_endpgm")
    L += OOL
    L += ['.section .rodata,"a"', ".p2align 6", f".amdhsa_kernel {NAME}",
          "  .amdhsa_next_free_vgpr 512", "  .amdhsa_next_free_sgpr 96", "  .amdhsa_accum_offset 256",
          "  .amdhsa_group_segment_fixed_size 0", "  .amdhsa_kernarg_size 48", "  .amdhsa_user_sgpr_count 2",
          "  .amdhsa_user_sgpr_kernarg_segment_ptr 1", "  .amdhsa_system_sgpr_workgroup_id_x 1", ".end_amdhsa_kernel"]
    open(OUT, "w").write("\n".join(L) + "\n")

main()
```

```python
import sys, struct, math

OUT = sys.argv[1] if len(sys.argv) > 1 else "standalone__softmax_full_causal__prompt.s"
OPT = dict(a.split("=") for a in sys.argv[2:])
def opt(name, default):
    return type(default)(OPT.get(name, default))

NAME = "standalone__softmax_full_causal__prompt_kernel"

def f2u(x):
    return struct.unpack("<I", struct.pack("<f", x))[0]

CSCALE = math.log2(math.e) / 16.0
TRAW = 8.0 / CSCALE

V_LANE = 1
V_KA = 2
V_VA = 10
V_DK = 14
V_DV = 22
V_QO = 24
V_WS = 25
V_QROW = 26
V_M = 27; V_MT = 28; V_MC = 29
V_L = 30
V_ALPHA = 34; V_PM = 35; V_TMP = 36; V_NINF = 37; V_THR = 38; V_TMP2 = 39
V_T8 = 40
V_FA = 44; V_FB = 46
V_TOUCH = 48; V_DUMMY = 49
V_S = [64, 96]
V_KF = 128; NKF = 8
V_VF = 160; NVF = 10
A_O = 0; A_Q = 128; A_Q2 = 192

S_Q, S_K, S_V, S_O, S_WS, S_DBG = 4, 8, 12, 16, 20, 24
S_W = 28; S_HB = 29; S_C = 30; S_REM = 31; S_KT = 32; S_MSK = 33
S_KOFF = 34; S_VOFF = 35; S_VOFF2 = 36; S_KF = 37; S_VF = 38; S_N1 = 39; S_SEG2 = 40; S_NT = 41
S_RESC = 42; S_PUB = 43; S_M0B = 44; S_OOB = 45; S_MODE = 48; S_QT = 49; S_N = 50; S_PAIR = 51
S_T0 = 52; S_T1 = 53; S_T2 = 54; S_T3 = 55; S_WSOFF = 46; S_QOFF = 47
S_MK = 56
S_TSMALL = 64

DKD = opt("dk", 4)
DVD = opt("dv", 6)
BARG = 63 - DKD
NODMA = opt("nodma", 0)

class I:
    __slots__ = ("text", "kind", "rd", "wr", "cost", "dsid", "need", "srcc")
    def __init__(self, text, kind, rd=(), wr=(), cost=1.0, dsid=None, need=(), srcc=()):
        self.text = text; self.kind = kind; self.rd = set(rd); self.wr = set(wr)
        self.cost = cost; self.dsid = dsid; self.need = tuple(need); self.srcc = set(srcc)

def R(p, b, n=1):
    return [f"{p}{b+i}" for i in range(n)]
def rs(p, b, n):
    return f"{p}[{b}:{b+n-1}]" if n > 1 else f"{p}{b}"

_lab = [0]
def newlab(s):
    _lab[0] += 1
    return f"L_{s}_{_lab[0]}"

def valu(text, rd, wr, cost=1.0): return I(text, "valu", rd, wr, cost)
def trans(text, rd, wr): return I(text, "trans", rd, wr, 2.0)
def salu(text, cost=0.5): return I(text, "salu", (), (), cost)
def label(l): return I(l + ":", "label", cost=0.0)
def raw(text, kind="other", cost=1.0): return I(text, kind, cost=cost)

_ds = [0]
def ds_k(frag, c, kb, slot):
    _ds[0] += 1
    d = V_KF + 4 * frag
    off = slot * 32768 + kb * 16384 + (c >> 3) * 256
    return I(f"ds_read_b128 {rs('v', d, 4)}, v{V_KA + (c & 7)} offset:{off}", "ds", [f"v{V_KA + (c & 7)}"], R("v", d, 4), 1.0, dsid=_ds[0])
def ds_v(frag, kc, db, half, slot):
    _ds[0] += 1
    d = V_VF + 4 * frag + 2 * half
    off = slot * 32768 + kc * 8192 + half * 4096 + (db >> 2) * 256
    return I(f"ds_read_b64_tr_b16 {rs('v', d, 2)}, v{V_VA + (db & 3)} offset:{off}", "ds", [f"v{V_VA + (db & 3)}"], R("v", d, 2), 1.0, dsid=_ds[0])

def mfma_qk(p, kb, c, frag, need):
    s = V_S[p] + 16 * kb
    a = V_KF + 4 * frag
    q = A_Q + 4 * c
    cc = "0" if c == 0 else rs("v", s, 16)
    rd = R("v", a, 4) + R("a", q, 4)
    return I(f"v_mfma_f32_32x32x16_bf16 {rs('v', s, 16)}, {rs('v', a, 4)}, {rs('a', q, 4)}, {cc}", "mfma",
             rd, R("v", s, 16), 2.0, need=need, srcc=([] if c == 0 else R("v", s, 16)))
def mfma_pv(p, kc, db, frag, need):
    pb = V_S[p] + 16 * (kc >> 1) + 8 * (kc & 1)
    a = V_VF + 4 * frag
    o = A_O + 16 * db
    return I(f"v_mfma_f32_32x32x16_bf16 {rs('a', o, 16)}, {rs('v', a, 4)}, {rs('v', pb, 4)}, {rs('a', o, 16)}", "mfma",
             R("v", a, 4) + R("v", pb, 4), R("a", o, 16), 2.0, need=need, srcc=R("a", o, 16))

def echain(p, kb):
    s = V_S[p] + 16 * kb
    out = []
    def fma(i): return valu(f"v_fma_f32 v{s+i}, v{s+i}, s{S_C}, -v{V_MC}", [f"v{s+i}", f"v{V_MC}"], [f"v{s+i}"])
    def ex(i): return trans(f"v_exp_f32 v{s+i}, v{s+i}", [f"v{s+i}"], [f"v{s+i}"])
    def add(i):
        l = V_L + (i & 3)
        return valu(f"v_add_f32 v{l}, v{l}, v{s+i}", [f"v{l}", f"v{s+i}"], [f"v{l}"])
    def pk(i):
        d = s + 8 * (i >> 3) + ((i & 7) >> 1)
        return valu(f"v_cvt_pk_bf16_f32 v{d}, v{s+i}, v{s+i+1}", [f"v{s+i}", f"v{s+i+1}"], [f"v{d}"])
    for i in range(19):
        if i < 16: out.append(fma(i))
        if 1 <= i <= 16: out.append(ex(i - 1))
        if 3 <= i <= 18:
            out.append(add(i - 3))
            if (i - 3) & 1: out.append(pk(i - 4))
    return out

def max16(p, kb, first):
    s = V_S[p] + 16 * kb
    out = []
    if first:
        out.append(valu(f"v_max3_f32 v{V_PM}, v{s}, v{s+1}, v{s+2}", R("v", s, 3), [f"v{V_PM}"]))
        i = 3
    else:
        i = 0
    while i + 1 < 16:
        out.append(valu(f"v_max3_f32 v{V_PM}, v{V_PM}, v{s+i}, v{s+i+1}", [f"v{V_PM}", f"v{s+i}", f"v{s+i+1}"], [f"v{V_PM}"]))
        i += 2
    if i < 16:
        out.append(valu(f"v_max_f32 v{V_PM}, v{V_PM}, v{s+i}", [f"v{V_PM}", f"v{s+i}"], [f"v{V_PM}"]))
    return out

def crosshalf_max():
    return [valu(f"v_mov_b32 v{V_TMP}, v{V_PM}", [f"v{V_PM}"], [f"v{V_TMP}"]),
            raw("s_nop 1", "nop", 1.0),
            I(f"v_permlane32_swap_b32 v{V_TMP}, v{V_PM}", "perm", [f"v{V_TMP}", f"v{V_PM}"], [f"v{V_TMP}", f"v{V_PM}"]),
            valu(f"v_max_f32 v{V_PM}, v{V_PM}, v{V_TMP}", [f"v{V_PM}", f"v{V_TMP}"], [f"v{V_PM}"])]

OOL = []

def mask_check(p, kb):
    lm = newlab(f"mask{kb}"); lr = newlab("ret")
    s = V_S[p] + 16 * kb
    t = [f"{lm}:", f"  s_lshl_b32 s{S_T0}, s{S_KT}, 6", f"  v_subrev_u32 v{V_THR}, s{S_T0}, v{V_QROW}"]
    for g in range(4):
        for r4 in range(4):
            r = 4 * g + r4
            ko = 32 * kb + 8 * g + r4
            t.append(f"  v_cmp_gt_i32 s[{S_MK+2*r4}:{S_MK+2*r4+1}], {ko}, v{V_THR}")
        for r4 in range(4):
            r = 4 * g + r4
            t.append(f"  v_cndmask_b32 v{s+r}, v{s+r}, v{V_NINF}, s[{S_MK+2*r4}:{S_MK+2*r4+1}]")
    t.append(f"  s_branch {lr}")
    OOL.extend(t)
    return [salu(f"s_cmp_ge_u32 s{S_KT}, s{S_MSK}"),
            I(f"s_cbranch_scc1 {lm}", "salu", R("v", s, 16), R("v", s, 16), 0.5),
            label(lr)]

def rare_check():
    lm = newlab("rare"); lr = newlab("ret")
    t = [f"{lm}:",
         f"  v_mov_b32 v{V_TMP}, v{V_PM}", "  s_nop 1", f"  v_permlane32_swap_b32 v{V_TMP}, v{V_PM}",
         f"  v_max3_f32 v{V_TMP}, v{V_M}, v{V_PM}, v{V_TMP}",
         f"  v_sub_f32 v{V_TMP2}, v{V_M}, v{V_TMP}",
         f"  v_mul_f32 v{V_TMP2}, s{S_C}, v{V_TMP2}",
         f"  v_exp_f32 v{V_ALPHA}, v{V_TMP2}",
         f"  v_mov_b32 v{V_M}, v{V_TMP}",
         f"  v_add_f32 v{V_MT}, {hex(f2u(TRAW))}, v{V_TMP}",
         f"  v_mul_f32 v{V_MC}, s{S_C}, v{V_TMP}"]
    for i in range(4):
        t.append(f"  v_mul_f32 v{V_L+i}, v{V_L+i}, v{V_ALPHA}")
    t += [f"  s_mov_b32 s{S_RESC}, 1", f"  s_branch {lr}"]
    OOL.extend(t)
    return [valu(f"v_cmp_gt_f32 vcc, v{V_PM}, v{V_MT}", [f"v{V_PM}", f"v{V_MT}"], ["vcc"]),
            salu(f"s_cbranch_vccnz {lm}"), label(lr)]

def resc_check():
    lm = newlab("resc"); lr = newlab("ret")
    t = [f"{lm}:", "  s_nop 15", "  s_nop 15"]
    for r0 in range(0, 128, 8):
        for i in range(8): t.append(f"  v_accvgpr_read_b32 v{V_T8+i}, a{A_O+r0+i}")
        for i in range(8): t.append(f"  v_mul_f32 v{V_T8+i}, v{V_T8+i}, v{V_ALPHA}")
        for i in range(8): t.append(f"  v_accvgpr_write_b32 a{A_O+r0+i}, v{V_T8+i}")
    t += [f"  s_mov_b32 s{S_RESC}, 0", "  s_nop 1", f"  s_branch {lr}"]
    OOL.extend(t)
    return [salu(f"s_cmp_lg_u32 s{S_RESC}, 0"), salu(f"s_cbranch_scc1 {lm}"), label(lr)]

S_HOOK = S_PUB
S_Q2OFF = 65; S_QN = 66
V_FLAG = 61 if not opt("stamps", 0) else 63
V_ML = 58
def ob_reg(g):
    if g < 16: return ("a", A_Q2 + 4 * g)
    if g < 30: return ("v", 200 + 4 * (g - 16))
    return ("v", 50 + 4 * (g - 30))
S_LINK = 96; S_PCH = 67
NPS = opt("nps", 8)
def ws_addr_lines():
    return [f"  s_lshl_b32 s{S_T0}, s{S_W}, 15", f"  s_add_u32 s{S_T0}, s{S_T0}, s{S_WSOFF}"]
def ml_addr_lines():
    return [f"  s_lshl_b32 s{S_T1}, s{S_W}, 9", f"  s_add_u32 s{S_T1}, s{S_T1}, s{S_WSOFF}", f"  s_add_u32 s{S_T1}, s{S_T1}, 0x20000",
            f"  v_lshlrev_b32 v{V_TMP2}, 3, v{V_LANE}"]
def set_touch(srd_a, srd_b):
    return [f"  s_mov_b64 s[{S_TA}:{S_TA+1}], s[{srd_a}:{srd_a+1}]", f"  s_mov_b64 s[{S_TA+2}:{S_TA+3}], s[{srd_a+2}:{srd_a+3}]",
            f"  s_mov_b64 s[{S_TB}:{S_TB+1}], s[{srd_b}:{srd_b+1}]", f"  s_mov_b64 s[{S_TB+2}:{S_TB+3}], s[{srd_b+2}:{srd_b+3}]"]
def hook_sub():
    t = ["L_hook:",
         f"  s_bitcmp1_b32 s{S_HOOK}, 0", "  s_cbranch_scc0 L_h1",
         f"  s_bitset0_b32 s{S_HOOK}, 0", f"  s_cmp_lg_u32 s{S_W}, 0", "  s_cbranch_scc1 L_h1",
         f"  v_mov_b32 v{V_TMP2}, 1", f"  v_mov_b32 v{V_THR}, 0",
         f"  s_mov_b64 s[{S_MK}:{S_MK+1}], exec", "  s_mov_b64 exec, 1",
         f"  buffer_store_byte v{V_TMP2}, v{V_THR}, s[{S_DBG}:{S_DBG+3}], s{S_PAIR} offen sc1",
         f"  s_mov_b64 exec, s[{S_MK}:{S_MK+1}]",
         "L_h1:",
         f"  s_bitcmp1_b32 s{S_HOOK}, 1", "  s_cbranch_scc0 L_h2",
         f"  s_cmp_eq_u32 s{S_TP}, 1", "  s_cbranch_scc0 L_p1",
         f"  s_lshl_b32 s{S_TAO}, s{S_R}, 15", f"  s_add_u32 s{S_TAO}, s{S_TAO}, s{S_HB}", f"  s_mov_b32 s{S_TBO}, s{S_TAO}",
         f"  s_mov_b32 s{S_TP}, 2", "  s_branch L_h2",
         "L_p1:", f"  s_cmp_eq_u32 s{S_TP}, 2", "  s_cbranch_scc0 L_p3"]
    t += set_touch(S_Q, S_Q)
    t += [f"  s_mov_b32 s{S_TAO}, s{S_Q2OFF}", f"  s_add_u32 s{S_TBO}, s{S_Q2OFF}, 0x8000", f"  s_mov_b32 s{S_TP}, 3", "  s_branch L_h2",
          "L_p3:", f"  s_mov_b32 s{S_TAO}, s{S_OOB}", f"  s_mov_b32 s{S_TBO}, s{S_OOB}", f"  s_bitset0_b32 s{S_HOOK}, 1",
          "L_h2:",
          f"  s_bitcmp1_b32 s{S_HOOK}, 2", "  s_cbranch_scc0 L_h3",
          f"  v_cmp_ne_u32 vcc, 0, v{V_FLAG}", "  s_cbranch_vccnz L_got",
          f"  v_mov_b32 v{V_THR}, 0",
          f"  buffer_load_ubyte v{V_FLAG}, v{V_THR}, s[{S_DBG}:{S_DBG+3}], s{S_PAIR} offen sc1",
          f"  s_setpc_b64 s[{S_LINK}:{S_LINK+1}]",
          "L_got:", "  buffer_inv sc1", f"  s_bitset0_b32 s{S_HOOK}, 2", f"  s_bitset1_b32 s{S_HOOK}, 4", f"  s_mov_b32 s{S_PCH}, 0"]
    t += ml_addr_lines()
    t += [f"  buffer_load_dwordx2 v[{V_ML}:{V_ML+1}], v{V_TMP2}, s[{S_WS}:{S_WS+3}], s{S_T1} offen sc1",
          "L_h3:",
          f"  s_and_b32 s{S_T1}, s{S_HOOK}, 0x18", "  s_cbranch_scc0 L_hret"]
    t += ws_addr_lines()
    nb = 32 // NPS
    for kind in ("st", "ld"):
        if kind == "st": t += [f"  s_bitcmp1_b32 s{S_HOOK}, 3", "  s_cbranch_scc0 L_ld_0"]
        for b in range(nb):
            t.append(f"L_{kind}_{b}:")
            if b < nb - 1: t += [f"  s_cmp_lg_u32 s{S_PCH}, {b}", f"  s_cbranch_scc1 L_{kind}_{b+1}"]
            for g in range(b * NPS, (b + 1) * NPS):
                p, r = ob_reg(g)
                if g % 4 == 0: t.append(f"  s_add_u32 s{S_T1}, s{S_T0}, {hex((g // 4) * 0x1000)}")
                op = "buffer_store_dwordx4" if kind == "st" else "buffer_load_dwordx4"
                t.append(f"  {op} {rs(p, r, 4)}, v{V_WS}, s[{S_WS}:{S_WS+3}], s{S_T1} offen offset:{(g&3)*1024} sc1")
            if b < nb - 1: t.append(f"  s_add_u32 s{S_PCH}, s{S_PCH}, 1")
            elif kind == "st": t += [f"  s_bitset0_b32 s{S_HOOK}, 3", f"  s_bitset1_b32 s{S_HOOK}, 0"]
            else: t.append(f"  s_bitset0_b32 s{S_HOOK}, 4")
            t.append(f"  s_setpc_b64 s[{S_LINK}:{S_LINK+1}]")
    t += ["L_hret:", f"  s_setpc_b64 s[{S_LINK}:{S_LINK+1}]"]
    return t
def pub_check():
    lr = newlab("ret")
    return [salu(f"s_cmp_lg_u32 s{S_HOOK}, 0"), salu(f"s_cbranch_scc0 {lr}"), salu(f"s_call_b64 s[{S_LINK}:{S_LINK+1}], L_hook"), label(lr)]

def dma_k(slot):
    g = []
    for q in range(8):
        grp = []
        if q in (0, 4):
            grp.append(salu(f"s_add_u32 m0, s{S_M0B}, {slot*32768 + (q>>2)*4096}"))
            grp.append(raw("s_nop 0", "nop", 0.5))
        if not NODMA:
            grp.append(I(f"buffer_load_dwordx4 v{V_DK+q}, s[{S_K}:{S_K+3}], s{S_KOFF} offen offset:{(q&3)*1024} lds", "vmem", [f"v{V_DK+q}"], [], opt("dmacost", 3.0)))
        g.append(grp)
    g.append([salu(f"s_add_u32 s{S_KF}, s{S_KF}, 1"), salu(f"s_add_u32 s{S_KOFF}, s{S_KOFF}, 0x8000"),
              salu(f"s_cmp_eq_u32 s{S_KF}, s{S_N1}"), salu(f"s_cselect_b32 s{S_KOFF}, s{S_SEG2}, s{S_KOFF}"),
              salu(f"s_cmp_ge_u32 s{S_KF}, s{S_NT}"), salu(f"s_cselect_b32 s{S_KOFF}, s{S_OOB}, s{S_KOFF}")])
    return g
def dma_v(slot):
    g = []
    for q in range(8):
        grp = []
        if q == 0:
            grp.append(salu(f"s_add_u32 s{S_VOFF2}, s{S_VOFF}, 0x1000"))
        if q in (0, 4):
            grp.append(salu(f"s_add_u32 m0, s{S_M0B}, {65536 + slot*32768 + (q>>2)*4096}"))
            grp.append(raw("s_nop 0", "nop", 0.5))
        so = S_VOFF if q < 4 else S_VOFF2
        if not NODMA:
            grp.append(I(f"buffer_load_dwordx4 v{V_DV+(q&1)}, s[{S_V}:{S_V+3}], s{so} offen offset:{(q&3)*1024} lds", "vmem", [f"v{V_DV+(q&1)}"], [], opt("dmacost", 3.0)))
        g.append(grp)
    g.append([salu(f"s_add_u32 s{S_VF}, s{S_VF}, 1"), salu(f"s_add_u32 s{S_VOFF}, s{S_VOFF}, 0x8000"),
              salu(f"s_cmp_eq_u32 s{S_VF}, s{S_N1}"), salu(f"s_cselect_b32 s{S_VOFF}, s{S_SEG2}, s{S_VOFF}"),
              salu(f"s_cmp_ge_u32 s{S_VF}, s{S_NT}"), salu(f"s_cselect_b32 s{S_VOFF}, s{S_OOB}, s{S_VOFF}")])
    return g

def schedule(mfmas, fixed, stream, pre_issued, head=()):
    n = len(mfmas)
    gc = lambda g: sum(x.cost for x in g)
    gaps = [list(fixed.get(i, [])) for i in range(n)]
    total = sum(gc(g) for gl in gaps for g in gl) + sum(gc(it[0]) for it in stream)
    per = total / n
    cum = 0.0
    si = 0
    for i in range(n):
        cum += sum(gc(g) for g in gaps[i])
        ins = []
        while si < len(stream):
            grp, e, lt = stream[si]
            if e > i: break
            c = gc(grp)
            if cum + c / 2 > per * (i + 1) and not (lt is not None and lt <= i) and i != n - 1: break
            ins.append(grp); cum += c; si += 1
        fx = gaps[i]; merged = []
        while fx or ins:
            if fx: merged.extend(fx.pop(0))
            if ins: merged.extend(ins.pop(0))
        gaps[i] = merged
    assert si == len(stream), "stream left over"
    out = list(head)
    issued = list(pre_issued); done = 0
    WGRP = opt("wgrp", 1)
    for i in range(n):
        m = mfmas[i]
        if m.need:
            need = [d for d in m.need]
            if i % WGRP == 0:
                for k in range(1, WGRP):
                    if i + k < n: need += [d for d in mfmas[i + k].need if d in issued]
            pos = max(issued.index(d) for d in need)
            if pos >= done:
                N = len(issued) - 1 - pos
                out.append(raw(f"s_waitcnt lgkmcnt({min(N,15)})", "wait", 0.5))
                done = len(issued) - min(N, 15)
        out.append(m)
        for x in gaps[i]:
            out.append(x)
            if x.kind == "ds": issued.append(x.dsid)
            if x.kind == "wait0": done = len(issued)
    return out, issued[done:]

def check_hazards(seq, name):
    if opt("novalu", 0) or opt("nods", 0): return
    seq0 = [x for x in seq if x.kind != "label"]
    seq = []
    for x in seq0:
        seq.append(x)
        if x.kind == "nop":
            for _ in range(int(x.text.split()[1])): seq.append(x)
    lastmf = {}; lastvalu = {}; lasttrans = {}; lastsrcc = {}; lastw = {}
    for i, x in enumerate(seq):
        if x.kind == "mfma" and x.text.split()[1].startswith("a["):
            for r in x.rd:
                if 64 <= int(r[1:]) < 128 and r in lastw and not lastw[r].startswith("v_cvt_pk"):
                    print(f"DEP {name}: P reg {r} last written by {lastw[r]} for {x.text}")
        for r in x.wr: lastw[r] = x.text
        isv = x.kind in ("valu", "trans", "perm")
        touch = x.rd | x.wr
        if x.kind == "mfma":
            for r in x.rd:
                if r in lastmf and i - lastmf[r] - 1 < 12: print(f"HAZ {name}: mfma->mfma AB {r} {x.text}")
                if r in lastvalu and i - lastvalu[r] - 1 < 2: print(f"HAZ {name}: valu->mfma {r} {x.text}")
            for r in x.srcc:
                if r in lastvalu and i - lastvalu[r] - 1 < 2: print(f"HAZ {name}: valu->mfma C {r} {x.text}")
            for r in x.wr - x.srcc:
                if r in lastmf and i - lastmf[r] - 1 < 12: print(f"HAZ {name}: mfma WAW {r} {x.text}")
        else:
            for r in touch:
                if r in lastmf and i - lastmf[r] - 1 < 12: print(f"HAZ {name}: mfma->other {r} dist {i-lastmf[r]-1} {x.text}")
            if isv:
                for r in x.wr:
                    if r in lastsrcc and i - lastsrcc[r] - 1 < 7: print(f"HAZ {name}: srcC WAR {r} {x.text}")
            if x.kind == "valu" or x.kind == "perm":
                for r in x.rd:
                    if r in lasttrans and i - lasttrans[r] - 1 < 1: print(f"HAZ {name}: trans->valu {r} {x.text}")
            if x.kind == "perm":
                for r in x.rd:
                    if r in lastvalu and i - lastvalu[r] - 1 < 2: print(f"HAZ {name}: valu->perm {r} {x.text}")
        if x.kind == "mfma":
            for r in x.wr: lastmf[r] = i
            for r in x.srcc: lastsrcc[r] = i
        if isv:
            for r in x.wr:
                lastvalu[r] = i
                if x.kind == "trans": lasttrans[r] = i
                else: lasttrans.pop(r, None)

PRE = [-(k + 1) for k in range(DKD)]

def k_prereads(slot):
    out = []
    for k in range(DKD):
        x = ds_k(k % NKF, k, 0, slot); x.dsid = PRE[k]; out.append(x)
    return out

def spread(groups, g0, step):
    d = {}
    for k, grp in enumerate(groups):
        d.setdefault(g0 + int(round(k * step)), []).append(grp)
    return d
def addfix(fixed, d):
    for k, v in d.items(): fixed.setdefault(k, []).extend(v)

STAMPS = opt("stamps", 0)
def stamp():
    if not STAMPS: return []
    return [raw("s_memtime s[92:93]"), raw("s_waitcnt lgkmcnt(0)", "wait"), raw("s_mov_b32 m0, s94"), raw("s_nop 0"), raw("v_writelane_b32 v60, s92, m0"), raw("s_add_u32 s94, s94, 1")]
def stamp_store():
    if not STAMPS: return []
    return txt(stamp()) + ["  s_memrealtime s[92:93]", "  s_waitcnt lgkmcnt(0)", "  v_writelane_b32 v60, s92, 63", "  s_lshl_b32 s92, s2, 12", f"  s_lshl_b32 s93, s{S_W}, 8", "  s_add_u32 s92, s92, s93", "  s_add_u32 s92, s92, 0x4000000",
            f"  v_lshlrev_b32 v61, 2, v{V_LANE}", f"  buffer_store_dword v60, v61, s[{S_WS}:{S_WS+3}], s92 offen"]
TOUCH = opt("touch", 2)
S_TA = 68; S_TB = 72; S_TAO = 76; S_TBO = 77; S_R = 78; S_TP = 79
def touch_groups():
    if not TOUCH or NODMA: return []
    return [[I(f"buffer_load_dword v{V_DUMMY}, v{V_TOUCH}, s[{S_TA}:{S_TA+3}], s{S_TAO} offen", "vmem", [], [], 2.0)],
            [I(f"buffer_load_dword v{V_DUMMY}, v{V_TOUCH}, s[{S_TB}:{S_TB+3}], s{S_TBO} offen", "vmem", [], [], 2.0)]]
V_QRB = 24; V_QDB = 62; QS = 131072
def q_dma(r, lbase, soff):
    g = []
    for k in range(8):
        t = V_T8 + (k & 3)
        g.append([valu(f"v_xor_b32 v{t}, {hex((4 * (k & 3)) << 4)}, v{V_QDB}", [], [f"v{t}"]),
                  salu(f"s_add_u32 m0, s{S_M0B}, {lbase + k * 1024}"),
                  salu(f"s_add_u32 s{S_T3}, s{soff}, {k * 2048 + r * 256}"),
                  I(f"buffer_load_dwordx4 v{t}, s[{S_Q}:{S_Q+3}], s{S_T3} offen lds", "vmem", [], [], 3.0)])
    return g
def q_reads(r, lbase):
    g = []
    for c in range(8):
        _ds[0] += 1
        t = V_T8 + 4 + (c & 3)
        d = A_Q + 4 * (8 * r + c)
        g.append([valu(f"v_xor_b32 v{t}, {hex((2 * c) << 4)}, v{V_QRB}", [], [f"v{t}"]),
                  I(f"ds_read_b128 {rs('a', d, 4)}, v{t} offset:{lbase - 98304}", "ds", [], R("a", d, 4), 1.0, dsid=_ds[0])])
    return g
def barrier_items():
    return [[raw(f"s_waitcnt vmcnt({2 if (TOUCH and not NODMA) else 0}) lgkmcnt(0)", "wait0", 0.5)], [raw("s_barrier", "bar", 1.0)] + stamp() + pub_check()]

def body(p):
    q = 1 - p
    fixed = {}; mf = []
    kid = {}
    for i in range(32):
        if i < DKD: kid[i] = PRE[i]
        else:
            x = ds_k(i % NKF, i & 15, i >> 4, q); kid[i] = x.dsid
            fixed.setdefault(i - DKD, []).append([x])
    for i in range(32):
        mf.append(mfma_qk(q, i >> 4, i & 15, i % NKF, [kid[i]]))
    for i in range(32):
        kc, db = i >> 3, i & 7
        a = ds_v(i % NVF, kc, db, 0, p); b = ds_v(i % NVF, kc, db, 1, p)
        fixed.setdefault(min(32 + i - DVD, BARG - 1), []).extend([[a], [b]])
        mf.append(mfma_pv(p, kc, db, i % NVF, [a.dsid, b.dsid]))
    dg = dma_k(p) + dma_v(q) + touch_groups()
    addfix(fixed, spread(dg, opt("dma0", 0), opt("dmastep", 2.0)))
    addfix(fixed, {BARG: barrier_items()})
    pr = k_prereads(p)
    for k in range(DKD): fixed.setdefault(64 - DKD + k, []).append([pr[k]])
    stream = []
    for x in echain(p, 1): stream.append(([x], 0, 44))
    stream.append((mask_check(q, 0), 19, None))
    for x in max16(q, 0, True): stream.append(([x], 19, None))
    stream.append((mask_check(q, 1), 35, None))
    for x in max16(q, 1, False): stream.append(([x], 35, None))
    stream.append((rare_check(), 35, None))
    stream.append(([salu(f"s_add_u32 s{S_KT}, s{S_KT}, 1")], 35, None))
    for x in echain(q, 0): stream.append(([x], 35, None))
    stream.append(([salu(f"s_sub_u32 s{S_REM}, s{S_REM}, 1")], 35, None))
    if opt("novalu", 0):
        stream = [([x for x in it[0] if x.kind == "label" or (x.kind == "salu" and "s_cmp" not in x.text and "branch" not in x.text)], it[1], it[2]) for it in stream]
        stream = [it for it in stream if it[0]]
    if opt("nods", 0):
        fixed = {g: [grp for grp in gl if grp and grp[0].kind != "ds"] for g, gl in fixed.items()}
        for m in mf: m.need = ()
    seq, left = schedule(mf, fixed, stream, PRE, head=resc_check())
    assert left == PRE or left == [] or opt("nods", 0), (left, PRE)
    return seq

def tail(p, qs=False):
    fixed = {}; mf = []
    head = [raw("s_waitcnt lgkmcnt(0)", "wait", 0.5)] + resc_check()
    pre = []
    for i in range(32):
        kc, db = i >> 3, i & 7
        a = ds_v(i % NVF, kc, db, 0, p); b = ds_v(i % NVF, kc, db, 1, p)
        if i < DVD:
            head.extend([a, b]); pre.extend([a.dsid, b.dsid])
        else:
            fixed.setdefault(min(i - DVD, BARG - 33), []).extend([[a], [b]])
        mf.append(mfma_pv(p, kc, db, i % NVF, [a.dsid, b.dsid]))
    dg = dma_k(p) + dma_v(1 - p)
    if qs:
        addfix(fixed, spread(q_dma(0, QS, S_Q2OFF), 0, 0.5))
        addfix(fixed, spread(dg, 4, 0.5))
        addfix(fixed, {13: [[raw("WAITQ", "wait", 0.5)]]})
        addfix(fixed, spread(q_reads(0, QS), 13, 0.5))
        addfix(fixed, {18: [[raw("s_waitcnt lgkmcnt(0)", "wait0", 0.5)]]})
        addfix(fixed, spread(q_dma(1, QS, S_Q2OFF) + touch_groups(), 18, 0.5))
        addfix(fixed, {BARG - 32: barrier_items()})
        addfix(fixed, spread(q_reads(1, QS), BARG - 32, 0.5))
    else:
        addfix(fixed, spread(dg + touch_groups(), 0, 1))
        addfix(fixed, {BARG - 32: barrier_items()})
    stream = []
    ec = echain(p, 1)
    for k, x in enumerate(ec): stream.append(([x], 0, 13 if k < 33 else 21))
    seq, left = schedule(mf, fixed, stream, pre, head=head)
    if qs:
        n = 0; cnt = None
        for x in seq:
            if x.text == "WAITQ":
                x.text = f"s_waitcnt vmcnt({n - 8})"; break
            if x.kind == "vmem": n += 1
        seq.append(raw("s_waitcnt lgkmcnt(0)", "wait", 0.5))
    return seq

def prologue(p, initial):
    out = []
    out.append(salu(f"s_lshl_b32 s{S_T0}, s{S_QT}, 7"))
    out.append(salu(f"s_lshl_b32 s{S_T1}, s{S_W}, 5"))
    out.append(salu(f"s_add_u32 s{S_T0}, s{S_T0}, s{S_T1}"))
    out.append(valu(f"v_and_b32 v{V_TMP}, 31, v{V_LANE}", [], [f"v{V_TMP}"]))
    out.append(valu(f"v_lshrrev_b32 v{V_TMP2}, 5, v{V_LANE}", [], [f"v{V_TMP2}"]))
    out.append(valu(f"v_lshlrev_b32 v{V_TMP2}, 2, v{V_TMP2}", [], [f"v{V_TMP2}"]))
    out.append(valu(f"v_sub_u32 v{V_TMP}, v{V_TMP}, v{V_TMP2}", [], [f"v{V_TMP}"]))
    out.append(valu(f"v_add_u32 v{V_QROW}, s{S_T0}, v{V_TMP}", [], [f"v{V_QROW}"]))
    for i in range(4): out.append(valu(f"v_mov_b32 v{V_L+i}, 0", [], [f"v{V_L+i}"]))
    out.append(salu(f"s_mov_b32 s{S_RESC}, 0"))
    out.append(salu(f"s_sub_u32 s{S_REM}, s{S_N}, 1"))
    if initial:
        out.append(raw("s_waitcnt vmcnt(0)", "wait"))
        for grp in q_reads(0, QS) + q_reads(1, 98304): out.extend(grp)
        out.append(raw("s_waitcnt lgkmcnt(0)", "wait"))
        out.append(raw("s_barrier", "bar"))
    out += stamp()
    fixed = {}; mf = []; kid = {}; pre = []
    for i in range(32):
        x = ds_k(i % NKF, i & 15, i >> 4, p); kid[i] = x.dsid
        if i < DKD: out.append(x); pre.append(x.dsid)
        else: fixed.setdefault(i - DKD, []).append([x])
        mf.append(mfma_qk(p, i >> 4, i & 15, i % NKF, [kid[i]]))
    stream = [([valu(f"v_accvgpr_write_b32 a{A_O+r}, 0", [], [f"a{A_O+r}"])], 0, None) for r in range(128)]
    if initial: addfix(fixed, spread(dma_k(1) + dma_v(0), 0, 1))
    seq, left = schedule(mf, fixed, stream, pre, head=out)
    seq.append(raw("s_waitcnt vmcnt(0) lgkmcnt(0)" if initial else "s_waitcnt lgkmcnt(0)", "wait0"))
    seq.append(raw("s_barrier", "bar"))
    seq += stamp()
    seq += k_prereads(1 - p)
    seq.append(raw("s_nop 7", "nop"))
    seq += mask_check(p, 0) + mask_check(p, 1)
    seq += max16(p, 0, True) + max16(p, 1, False) + crosshalf_max()
    seq.append(valu(f"v_mov_b32 v{V_M}, v{V_PM}", [f"v{V_PM}"], [f"v{V_M}"]))
    seq.append(valu(f"v_add_f32 v{V_MT}, {hex(f2u(TRAW))}, v{V_PM}", [f"v{V_PM}"], [f"v{V_MT}"]))
    seq.append(valu(f"v_mul_f32 v{V_MC}, s{S_C}, v{V_PM}", [f"v{V_PM}"], [f"v{V_MC}"]))
    seq.append(salu(f"s_add_u32 s{S_KT}, s{S_KT}, 1"))
    seq += echain(p, 0)
    return seq

def txt(seq):
    return [("" if x.kind == "label" else "  ") + x.text for x in seq]

def lsum_lines():
    return [f"  v_add_f32 v{V_L}, v{V_L}, v{V_L+1}", f"  v_add_f32 v{V_L+2}, v{V_L+2}, v{V_L+3}",
            f"  v_add_f32 v{V_L}, v{V_L}, v{V_L+2}"]
def crosshalf_add(reg):
    return [f"  v_mov_b32 v{V_TMP}, v{reg}", "  s_nop 1", f"  v_permlane32_swap_b32 v{V_TMP}, v{reg}",
            f"  v_add_f32 v{reg}, v{reg}, v{V_TMP}"]

def store_out(merge):
    t = [f"  s_lshl_b32 s{S_T0}, s{S_QT}, 16", f"  s_add_u32 s{S_T0}, s{S_T0}, s{S_HB}",
         f"  s_lshl_b32 s{S_T1}, s{S_W}, 14", f"  s_add_u32 s{S_T0}, s{S_T0}, s{S_T1}",
         f"  v_and_b32 v41, 31, v{V_LANE}", f"  v_lshrrev_b32 v42, 5, v{V_LANE}",
         f"  v_lshlrev_b32 v40, 9, v41", f"  v_lshl_add_u32 v40, v42, 3, v40", f"  v_add_u32 v40, s{S_T1}, v40",
         f"  v_lshlrev_b32 v41, 4, v41"]
    t += [f"  v_and_b32 v43, 31, v{V_LANE}", f"  v_xor_b32 v43, v43, v42", f"  v_lshlrev_b32 v43, 4, v43",
          f"  v_lshl_add_u32 v43, v42, 9, v43", f"  v_add_u32 v43, s{S_T1}, v43"]
    stA = []; stB = []
    for db in range(8):
        for pr in range(2):
            n = db * 2 + pr
            tb = 64 + 32 * (n & 1)
            r0 = 16 * db + 8 * pr
            A = []; B = []
            for i in range(8): A.append(f"  v_accvgpr_read_b32 v{tb+i}, a{A_O+r0+i}")
            ob = []
            if merge:
                for h in range(2):
                    p, b = ob_reg(2 * n + h)
                    if p == "a":
                        for i in range(4): A.append(f"  v_accvgpr_read_b32 v{tb+16+4*h+i}, a{b+i}")
                        b = tb + 16 + 4 * h
                    ob += [b, b + 2]
            for gsel in range(2):
                ch = 4 * db + 2 * pr + gsel
                A.append(f"  v_xor_b32 v{tb+12+gsel}, {hex(ch << 4)}, v41")
            for gsel in range(2):
                A.append(f"  v_add_u32 v{tb+12+gsel}, v{tb+12+gsel}, v40")
            for i in range(0, 8, 2):
                B.append(f"  v_pk_mul_f32 v[{tb+i}:{tb+i+1}], v[{tb+i}:{tb+i+1}], v[{V_FA}:{V_FA+1}]")
            if merge:
                for i in range(0, 8, 2):
                    b = ob[i // 2]
                    B.append(f"  v_pk_fma_f32 v[{tb+i}:{tb+i+1}], v[{b}:{b+1}], v[{V_FB}:{V_FB+1}], v[{tb+i}:{tb+i+1}]")
            for i in range(4):
                B.append(f"  v_cvt_pk_bf16_f32 v{tb+8+i}, v{tb+2*i}, v{tb+2*i+1}")
            for gsel in range(2):
                B.append(f"  ds_write_b64 v{tb+12+gsel}, v[{tb+8+2*gsel}:{tb+9+2*gsel}]")
            stA.append(A); stB.append(B)
    t += stA[0]
    for n in range(16):
        X = list(stB[n]); Y = list(stA[n + 1]) if n < 15 else []
        while X or Y:
            if X: t.append(X.pop(0))
            if Y: t.append(Y.pop(0))
    t.append("  s_waitcnt lgkmcnt(0)")
    for k in range(16):
        t.append(f"  v_xor_b32 v{128+k}, {hex((2 * k) << 4)}, v43")
        t.append(f"  ds_read_b128 v[{64+4*k}:{64+4*k+3}], v{128+k} offset:{k*1024}")
    for k in range(16):
        if k % 4 == 0 and k: t.append(f"  s_add_u32 s{S_T0}, s{S_T0}, 0x1000")
        t.append(f"  s_waitcnt lgkmcnt({15-k})")
        t.append(f"  buffer_store_dwordx4 v[{64+4*k}:{64+4*k+3}], v{V_WS}, s[{S_O}:{S_O+3}], s{S_T0} offen offset:{(k&3)*1024}")
    return t

def main():
    L = []
    L += ["; Kernarg layout (48 bytes): q, k, v, out, debug, ws pointers (bf16 tensors 1x16x2048x256)",
          "; causal flash attention fwd: 256 WGs x 4 waves, 128 q rows per WG, split-K pairs for causal balance",
          "; @launch grid=(256,1,1) block=(256,1,1) lds=163840",
          '.amdgcn_target "amdgcn-amd-amdhsa--gfx950"', ".text", f".globl {NAME}", ".p2align 8",
          f".type {NAME},@function", f"{NAME}:"]
    a = L.append
    a("  s_cmp_ge_u32 s2, 256"); a("  s_cbranch_scc1 L_end")
    a("  s_load_dwordx4 s[80:83], s[0:1], 0"); a("  s_load_dwordx4 s[84:87], s[0:1], 16"); a("  s_load_dwordx4 s[88:91], s[0:1], 32")
    if STAMPS:
        a("  s_mov_b32 s94, 0"); a("  v_mov_b32 v60, 0"); L.extend(txt(stamp()))
        a("  s_memrealtime s[92:93]"); a("  s_waitcnt lgkmcnt(0)"); a("  v_writelane_b32 v60, s92, 62")
    a(f"  v_and_b32 v{V_LANE}, 63, v0"); a(f"  v_lshrrev_b32 v{V_TMP}, 6, v0"); a("  s_nop 0")
    a(f"  v_readfirstlane_b32 s{S_W}, v{V_TMP}")
    a(f"  s_and_b32 s{S_T0}, s2, 7"); a(f"  s_lshr_b32 s{S_T1}, s2, 3"); a(f"  s_and_b32 s{S_T2}, s{S_T1}, 1")
    a(f"  s_lshl_b32 s{S_T0}, s{S_T0}, 1"); a(f"  s_or_b32 s{S_T0}, s{S_T0}, s{S_T2}")
    a(f"  s_lshr_b32 s{S_T1}, s{S_T1}, 1")
    a(f"  s_lshl_b32 s{S_HB}, s{S_T0}, 20")
    a(f"  s_mov_b32 s{S_C}, {hex(f2u(CSCALE))}")
    a(f"  s_mov_b32 s{S_OOB}, 0x7ff00000")
    a(f"  s_mov_b32 s{S_KF}, 0"); a(f"  s_mov_b32 s{S_VF}, 0")
    a(f"  s_mov_b32 s{S_SEG2}, s{S_HB}")
    a(f"  s_lshl_b32 s{S_M0B}, s{S_W}, 13")
    a(f"  s_mov_b32 s{S_R}, s{S_T1}"); a(f"  s_mov_b32 s{S_TP}, 1")
    a(f"  s_add_u32 s{S_TAO}, s{S_T1}, 16"); a(f"  s_lshl_b32 s{S_TAO}, s{S_TAO}, 15"); a(f"  s_add_u32 s{S_TAO}, s{S_TAO}, s{S_HB}"); a(f"  s_mov_b32 s{S_TBO}, s{S_TAO}")
    dl = [int(c) for c in opt("delta", "22100000")]
    dtab = sum(d << (2 * t) for t, d in enumerate(dl))
    a(f"  s_sub_u32 s{S_T2}, 15, s{S_T1}"); a(f"  s_min_u32 s{S_TSMALL}, s{S_T1}, s{S_T2}")
    a(f"  s_lshl_b32 s{S_T2}, s{S_TSMALL}, 1"); a(f"  s_lshr_b32 s{S_T3}, {hex(dtab)}, s{S_T2}"); a(f"  s_and_b32 s{S_T3}, s{S_T3}, 3")
    a(f"  s_sub_u32 s{S_N1}, 15, s{S_T2}"); a(f"  s_sub_u32 s{S_N1}, s{S_N1}, s{S_T3}")
    a(f"  s_cmp_lt_u32 s{S_T1}, 8"); a("  s_cbranch_scc0 L_typeA")
    a(f"  s_sub_u32 s{S_QT}, 15, s{S_T1}")
    a(f"  s_sub_u32 s{S_NT}, 17, s{S_T3}")
    a(f"  s_mov_b32 s{S_N}, s{S_N1}"); a(f"  s_mov_b32 s{S_KT}, 0"); a(f"  s_mov_b32 s{S_MSK}, 1000"); a(f"  s_mov_b32 s{S_MODE}, 0")
    a(f"  s_lshl_b32 s{S_Q2OFF}, s{S_T1}, 16"); a(f"  s_add_u32 s{S_Q2OFF}, s{S_Q2OFF}, s{S_HB}")
    a(f"  s_mov_b32 s{S_HOOK}, 2")
    a("  s_branch L_common")
    a("L_typeA:")
    a(f"  s_mov_b32 s{S_QT}, s{S_T1}")
    a(f"  s_mov_b32 s{S_KT}, s{S_N1}")
    a(f"  s_add_u32 s{S_NT}, 17, s{S_T3}")
    a(f"  s_mov_b32 s{S_N1}, s{S_NT}"); a(f"  s_mov_b32 s{S_N}, s{S_NT}"); a(f"  s_lshl_b32 s{S_MSK}, s{S_T1}, 1"); a(f"  s_mov_b32 s{S_MODE}, 2")
    a(f"  s_mov_b32 s{S_Q2OFF}, s{S_OOB}")
    a(f"  s_mov_b32 s{S_HOOK}, 6")
    a("L_common:")
    a(f"  s_lshl_b32 s{S_PAIR}, s{S_T0}, 3"); a(f"  s_add_u32 s{S_PAIR}, s{S_PAIR}, s{S_TSMALL}")
    a(f"  s_mul_i32 s{S_WSOFF}, s{S_PAIR}, 0x21000")
    a(f"  s_lshl_b32 s{S_KOFF}, s{S_KT}, 15"); a(f"  s_add_u32 s{S_KOFF}, s{S_KOFF}, s{S_HB}"); a(f"  s_mov_b32 s{S_VOFF}, s{S_KOFF}")
    a(f"  s_lshl_b32 s{S_QOFF}, s{S_QT}, 16"); a(f"  s_add_u32 s{S_QOFF}, s{S_QOFF}, s{S_HB}")
    l = V_LANE; t0 = V_T8; t1 = V_T8 + 1; t2 = V_T8 + 2; t3 = V_T8 + 3; t4 = V_T8 + 4
    a(f"  v_and_b32 v{t0}, 31, v{l}")
    a(f"  v_lshrrev_b32 v{t1}, 5, v{l}")
    a(f"  v_and_b32 v{t2}, 15, v{l}")
    a(f"  v_xor_b32 v{t4}, v{t0}, v{t1}")
    a(f"  v_lshlrev_b32 v{t4}, 4, v{t4}"); a(f"  v_lshl_add_u32 v{t4}, v{t1}, 9, v{t4}"); a(f"  v_add_u32 v{t4}, s{S_M0B}, v{t4}")
    for q in range(8):
        a(f"  v_xor_b32 v{V_DK+q}, {hex((2*q) << 4 | (q>>2)*4096)}, v{t4}")
    a(f"  v_lshrrev_b32 v{t3}, 4, v{l}"); a(f"  v_xor_b32 v{V_QDB}, v{t2}, v{t3}"); a(f"  v_lshlrev_b32 v{V_QDB}, 4, v{V_QDB}")
    a(f"  v_lshl_add_u32 v{V_QDB}, v{t3}, 9, v{V_QDB}"); a(f"  s_lshl_b32 s{S_T1}, s{S_W}, 14"); a(f"  v_add_u32 v{V_QDB}, s{S_T1}, v{V_QDB}")
    a(f"  v_xor_b32 v{V_QRB}, v{t1}, v{t2}"); a(f"  v_lshlrev_b32 v{V_QRB}, 4, v{V_QRB}"); a(f"  v_lshl_add_u32 v{V_QRB}, v{t0}, 8, v{V_QRB}")
    a(f"  s_add_u32 s{S_T1}, s{S_M0B}, 98304"); a(f"  v_add_u32 v{V_QRB}, s{S_T1}, v{V_QRB}")
    L.extend(txt(stamp()))
    a("  s_waitcnt lgkmcnt(0)")
    L.extend(txt(stamp()))
    for (srd, lo, n) in ((S_K, 82, 0x1000000), (S_Q, 80, 0x1000000)):
        a(f"  s_mov_b32 s{srd}, s{lo}"); a(f"  s_and_b32 s{srd+1}, s{lo+1}, 0xffff"); a(f"  s_mov_b32 s{srd+2}, {hex(n)}"); a(f"  s_mov_b32 s{srd+3}, 0x00020000")
    for grp in dma_k(0): L += txt(grp)
    KEEP = [f"  v_mov_b32 v{128+i}, v{V_T8+i}" for i in range(3)]
    L += KEEP
    for grp in q_dma(0, QS, S_QOFF) + q_dma(1, 98304, S_QOFF): L += txt(grp)
    L += [f"  v_mov_b32 v{V_T8+i}, v{128+i}" for i in range(3)]
    L.extend(txt(stamp()))
    for (srd, lo, n) in ((S_V, 84, 0x1000000), (S_O, 86, 0x1000000), (S_DBG, 88, 256), (S_WS, 90, 0x10000000)):
        a(f"  s_mov_b32 s{srd}, s{lo}"); a(f"  s_and_b32 s{srd+1}, s{lo+1}, 0xffff"); a(f"  s_mov_b32 s{srd+2}, {hex(n)}"); a(f"  s_mov_b32 s{srd+3}, 0x00020000")
    L += set_touch(S_K, S_V)
    a(f"  v_xor_b32 v{t3}, v{t1}, v{t2}"); a(f"  v_lshlrev_b32 v{t3}, 4, v{t3}"); a(f"  v_lshl_add_u32 v{t3}, v{t0}, 9, v{t3}")
    for c7 in range(8):
        a(f"  v_xor_b32 v{V_KA+c7}, {hex((2*c7) << 4)}, v{t3}")
    a(f"  v_lshlrev_b32 v{t3}, 2, v{t1}"); a(f"  v_xor_b32 v{t3}, v{t3}, v{t0}")
    a(f"  v_lshlrev_b32 v{t3}, 4, v{t3}"); a(f"  v_lshl_add_u32 v{t3}, v{t1}, 9, v{t3}"); a(f"  v_add_u32 v{V_DV}, s{S_M0B}, v{t3}")
    a(f"  v_xor_b32 v{V_DV+1}, 0x80, v{V_DV}")
    a(f"  v_lshrrev_b32 v{t3}, 2, v{t2}")
    a(f"  v_lshl_add_u32 v{t4}, v{t1}, 2, v{t3}")
    a(f"  v_lshlrev_b32 v{t4}, 9, v{t4}")
    a(f"  v_bfe_u32 v{t0}, v{l}, 4, 1"); a(f"  v_lshl_add_u32 v{t4}, v{t0}, 5, v{t4}")
    a(f"  v_and_b32 v{t0}, 3, v{l}"); a(f"  v_lshl_add_u32 v{t4}, v{t0}, 3, v{t4}")
    a(f"  v_add_u32 v{t4}, 0x10000, v{t4}")
    for dbl in range(4):
        a(f"  v_xor_b32 v{t0}, {dbl}, v{t3}"); a(f"  v_lshl_add_u32 v{V_VA+dbl}, v{t0}, 6, v{t4}")
    a(f"  v_lshlrev_b32 v{V_WS}, 4, v{l}")
    a(f"  v_lshlrev_b32 v{V_TOUCH}, 7, v0")
    a(f"  v_mov_b32 v{V_NINF}, 0xff800000")
    a(f"  v_mov_b32 v{V_FLAG}, 0")
    if opt("nods", 0):
        for r in range(128, 200): a(f"  v_mov_b32 v{r}, 0")
    pro_i = prologue(0, True); check_hazards(pro_i, "pro_i")
    L += txt(pro_i)
    a("L_after_pro0:")
    a(f"  s_cmp_eq_u32 s{S_REM}, 0"); a("  s_cbranch_scc1 L_tail0")
    b0 = body(0); b1 = body(1)
    check_hazards(pro_i + b0 + b1 + b0, "loop")
    a("L_body0:"); L += txt(b0)
    a("L_after_pro1:")
    a(f"  s_cmp_eq_u32 s{S_REM}, 0"); a("  s_cbranch_scc1 L_tail1")
    a("L_body1:"); L += txt(b1)
    a(f"  s_cmp_lg_u32 s{S_REM}, 0"); a("  s_cbranch_scc1 L_body0")
    t0s = tail(0); t1s = tail(1)
    check_hazards(b1 + t0s, "tail0"); check_hazards(b0 + t1s, "tail1")
    a("L_tail0:"); a(f"  s_cmp_eq_u32 s{S_MODE}, 0"); a("  s_cbranch_scc1 L_tailq0"); L += txt(t0s); a("  s_branch L_epi")
    tq0 = tail(0, True); tq1 = tail(1, True)
    check_hazards(b1 + tq0, "tailq0"); check_hazards(b0 + tq1, "tailq1")
    a("L_tailq0:"); L += txt(tq0); a("  s_branch L_epi")
    a("L_tailq1:"); L += txt(tq1); a("  s_branch L_epi")
    a("L_tail1:"); a(f"  s_cmp_eq_u32 s{S_MODE}, 0"); a("  s_cbranch_scc1 L_tailq1"); L += txt(t1s)
    a("L_epi:")
    L.extend(txt(stamp()))
    a("  s_nop 15"); a("  s_nop 15")
    L += lsum_lines()
    a(f"  s_cmp_eq_u32 s{S_MODE}, 1"); a("  s_cbranch_scc1 L_final")
    a(f"  s_cmp_eq_u32 s{S_MODE}, 2"); a("  s_cbranch_scc1 L_merge")
    L += ml_addr_lines()
    a(f"  v_mov_b32 v{V_T8}, v{V_M}"); a(f"  v_mov_b32 v{V_T8+1}, v{V_L}")
    a(f"  buffer_store_dwordx2 v[{V_T8}:{V_T8+1}], v{V_TMP2}, s[{S_WS}:{S_WS+3}], s{S_T1} offen sc1")
    a(f"  s_cmp_gt_u32 s{S_TSMALL}, {opt('tdirect', 2)}"); a("  s_cbranch_scc1 L_copy")
    L += ws_addr_lines()
    for g in range(32):
        if g and g % 4 == 0: a(f"  s_add_u32 s{S_T0}, s{S_T0}, 0x1000")
        a(f"  buffer_store_dwordx4 a[{A_O+4*g}:{A_O+4*g+3}], v{V_WS}, s[{S_WS}:{S_WS+3}], s{S_T0} offen offset:{(g&3)*1024} sc1")
    a(f"  s_bitset1_b32 s{S_HOOK}, 0")
    a("  s_branch L_sw2")
    a("L_copy:")
    for g in range(32):
        p, r = ob_reg(g)
        for i in range(4):
            a(f"  v_accvgpr_mov_b32 a{r+i}, a{A_O+4*g+i}" if p == "a" else f"  v_accvgpr_read_b32 v{r+i}, a{A_O+4*g+i}")
    a(f"  s_bitset1_b32 s{S_HOOK}, 3"); a(f"  s_mov_b32 s{S_PCH}, 0")
    a("L_sw2:")
    a(f"  s_mov_b32 s{S_QT}, s{S_TSMALL}"); a(f"  s_lshl_b32 s{S_MSK}, s{S_TSMALL}, 1"); a(f"  s_add_u32 s{S_N}, s{S_MSK}, 2")
    a(f"  s_mov_b32 s{S_KT}, 0"); a(f"  s_mov_b32 s{S_MODE}, 1")
    a(f"  s_and_b32 s{S_T0}, s{S_N1}, 1"); a(f"  s_cmp_eq_u32 s{S_T0}, 1"); a("  s_cbranch_scc1 L_pro1")
    p0 = prologue(0, False); check_hazards(p0 + b0, "pro0")
    L += txt(p0); a("  s_branch L_after_pro0")
    a("L_pro1:")
    p1 = prologue(1, False); check_hazards(p1 + b1, "pro1")
    L += txt(p1); a("  s_branch L_after_pro1")
    a("L_final:")
    a(f"  s_and_b32 s{S_HOOK}, s{S_HOOK}, 9"); a("  s_cbranch_scc0 L_final2")
    a("L_flushB:")
    a(f"  s_bitcmp1_b32 s{S_HOOK}, 3"); a("  s_cbranch_scc0 L_flushB2")
    a(f"  s_call_b64 s[{S_LINK}:{S_LINK+1}], L_hook"); a(f"  s_bitset0_b32 s{S_HOOK}, 0"); a("  s_branch L_flushB")
    a("L_flushB2:")
    a("  s_waitcnt vmcnt(0)"); a("  s_barrier"); a(f"  s_mov_b32 s{S_HOOK}, 1"); a(f"  s_call_b64 s[{S_LINK}:{S_LINK+1}], L_hook")
    a("L_final2:")
    L += crosshalf_add(V_L)
    a(f"  v_rcp_f32 v{V_FA}, v{V_L}"); a("  s_nop 0"); a(f"  v_mov_b32 v{V_FA+1}, v{V_FA}")
    if opt("twice", 0):
        a("  s_mov_b32 s95, 2"); a("L_twice:"); L.extend(txt(stamp()))
    L += store_out(False)
    if opt("twice", 0):
        a("  s_sub_u32 s95, s95, 1"); a("  s_cmp_lg_u32 s95, 0"); a("  s_cbranch_scc1 L_twice")
    L += stamp_store()
    a("  s_endpgm")
    a("L_merge:")
    a(f"  s_mov_b32 s{S_T2}, 0x400000")
    a("L_flushA:")
    a(f"  s_and_b32 s{S_HOOK}, s{S_HOOK}, 0x14"); a("  s_cbranch_scc0 L_have")
    a("  s_waitcnt vmcnt(0)")
    a(f"  s_call_b64 s[{S_LINK}:{S_LINK+1}], L_hook")
    a(f"  s_sub_u32 s{S_T2}, s{S_T2}, 1"); a(f"  s_cmp_lg_u32 s{S_T2}, 0"); a("  s_cbranch_scc1 L_flushA")
    a("L_have:")
    L.extend(txt(stamp()))
    a("  s_waitcnt vmcnt(0)")
    a(f"  v_max_f32 v{V_TMP}, v{V_M}, v{V_ML}")
    a(f"  v_sub_f32 v{V_M}, v{V_M}, v{V_TMP}"); a(f"  v_sub_f32 v{V_ML}, v{V_ML}, v{V_TMP}")
    a(f"  v_mul_f32 v{V_M}, s{S_C}, v{V_M}"); a(f"  v_mul_f32 v{V_ML}, s{S_C}, v{V_ML}")
    a(f"  v_exp_f32 v{V_M}, v{V_M}"); a(f"  v_exp_f32 v{V_ML}, v{V_ML}"); a("  s_nop 0")
    a(f"  v_mul_f32 v{V_L}, v{V_L}, v{V_M}"); a(f"  v_fma_f32 v{V_L}, v{V_ML+1}, v{V_ML}, v{V_L}")
    L += crosshalf_add(V_L)
    a(f"  v_rcp_f32 v{V_L}, v{V_L}"); a("  s_nop 0")
    a(f"  v_mul_f32 v{V_FA}, v{V_M}, v{V_L}"); a(f"  v_mul_f32 v{V_FB}, v{V_ML}, v{V_L}")
    a(f"  v_mov_b32 v{V_FA+1}, v{V_FA}"); a(f"  v_mov_b32 v{V_FB+1}, v{V_FB}")
    L += store_out(True)
    L += stamp_store()
    a("L_end:")
    a("  s_endpgm")
    L += hook_sub()
    L += OOL
    L += ['.section .rodata,"a"', ".p2align 6", f".amdhsa_kernel {NAME}",
          "  .amdhsa_next_free_vgpr 512", "  .amdhsa_next_free_sgpr 100", "  .amdhsa_accum_offset 256",
          "  .amdhsa_group_segment_fixed_size 0", "  .amdhsa_kernarg_size 48", "  .amdhsa_user_sgpr_count 2",
          "  .amdhsa_user_sgpr_kernarg_segment_ptr 1", "  .amdhsa_system_sgpr_workgroup_id_x 1", ".end_amdhsa_kernel"]
    open(OUT, "w").write("\n".join(L) + "\n")

main()
```

```python
import sys, struct, math

OUT = sys.argv[1] if len(sys.argv) > 1 else "standalone__softmax_full_causal__prompt.s"
OPT = dict(a.split("=") for a in sys.argv[2:])
def opt(name, default):
    return type(default)(OPT.get(name, default))

NAME = "standalone__softmax_full_causal__prompt_kernel"

def f2u(x):
    return struct.unpack("<I", struct.pack("<f", x))[0]

CSCALE = math.log2(math.e) / 16.0
TRAW = 8.0 / CSCALE

V_LANE = 1
V_KA = 2
V_VA = 10
V_DK = 14
V_DV = 22
V_QO = 24
V_WS = 25
V_QROW = 26
V_M = 27; V_MT = 28; V_MC = 29
V_L = 30
V_ALPHA = 34; V_PM = 35; V_TMP = 36; V_NINF = 37; V_THR = 38; V_TMP2 = 39
V_T8 = 40
V_FA = 44; V_FB = 46
V_TOUCH = 48; V_DUMMY = 49
V_S = [64, 96]
V_KF = 128; NKF = 8
V_VF = 160; NVF = 10
A_O = 0; A_Q = 128; A_Q2 = 192

S_Q, S_K, S_V, S_O, S_WS, S_DBG = 4, 8, 12, 16, 20, 24
S_W = 28; S_HB = 29; S_C = 30; S_REM = 31; S_KT = 32; S_MSK = 33
S_KOFF = 34; S_VOFF = 35; S_VOFF2 = 36; S_KF = 37; S_VF = 38; S_N1 = 39; S_SEG2 = 40; S_NT = 41
S_RESC = 42; S_PUB = 43; S_M0B = 44; S_OOB = 45; S_MODE = 48; S_QT = 49; S_N = 50; S_PAIR = 51
S_T0 = 52; S_T1 = 53; S_T2 = 54; S_T3 = 55; S_WSOFF = 46; S_QOFF = 47
S_MK = 56
S_TSMALL = 64

DKD = opt("dk", 4)
DVD = opt("dv", 6)
BARG = 63 - DKD
NODMA = opt("nodma", 0)

class I:
    __slots__ = ("text", "kind", "rd", "wr", "cost", "dsid", "need", "srcc")
    def __init__(self, text, kind, rd=(), wr=(), cost=1.0, dsid=None, need=(), srcc=()):
        self.text = text; self.kind = kind; self.rd = set(rd); self.wr = set(wr)
        self.cost = cost; self.dsid = dsid; self.need = tuple(need); self.srcc = set(srcc)

def R(p, b, n=1):
    return [f"{p}{b+i}" for i in range(n)]
def rs(p, b, n):
    return f"{p}[{b}:{b+n-1}]" if n > 1 else f"{p}{b}"

_lab = [0]
def newlab(s):
    _lab[0] += 1
    return f"L_{s}_{_lab[0]}"

def valu(text, rd, wr, cost=1.0): return I(text, "valu", rd, wr, cost)
def trans(text, rd, wr): return I(text, "trans", rd, wr, 2.0)
def salu(text, cost=0.5): return I(text, "salu", (), (), cost)
def label(l): return I(l + ":", "label", cost=0.0)
def raw(text, kind="other", cost=1.0): return I(text, kind, cost=cost)

_ds = [0]
def ds_k(frag, c, kb, slot):
    _ds[0] += 1
    d = V_KF + 4 * frag
    off = slot * 32768 + kb * 16384 + (c >> 3) * 256
    return I(f"ds_read_b128 {rs('v', d, 4)}, v{V_KA + (c & 7)} offset:{off}", "ds", [f"v{V_KA + (c & 7)}"], R("v", d, 4), 1.0, dsid=_ds[0])
def ds_v(frag, kc, db, half, slot):
    _ds[0] += 1
    d = V_VF + 4 * frag + 2 * half
    off = slot * 32768 + kc * 8192 + half * 4096 + (db >> 2) * 256
    return I(f"ds_read_b64_tr_b16 {rs('v', d, 2)}, v{V_VA + (db & 3)} offset:{off}", "ds", [f"v{V_VA + (db & 3)}"], R("v", d, 2), 1.0, dsid=_ds[0])

def mfma_qk(p, kb, c, frag, need):
    s = V_S[p] + 16 * kb
    a = V_KF + 4 * frag
    q = A_Q + 4 * c
    cc = "0" if c == 0 else rs("v", s, 16)
    rd = R("v", a, 4) + R("a", q, 4)
    return I(f"v_mfma_f32_32x32x16_bf16 {rs('v', s, 16)}, {rs('v', a, 4)}, {rs('a', q, 4)}, {cc}", "mfma",
             rd, R("v", s, 16), 2.0, need=need, srcc=([] if c == 0 else R("v", s, 16)))
def mfma_pv(p, kc, db, frag, need):
    pb = V_S[p] + 16 * (kc >> 1) + 8 * (kc & 1)
    a = V_VF + 4 * frag
    o = A_O + 16 * db
    return I(f"v_mfma_f32_32x32x16_bf16 {rs('a', o, 16)}, {rs('v', a, 4)}, {rs('v', pb, 4)}, {rs('a', o, 16)}", "mfma",
             R("v", a, 4) + R("v", pb, 4), R("a", o, 16), 2.0, need=need, srcc=R("a", o, 16))

def echain(p, kb):
    s = V_S[p] + 16 * kb
    out = []
    def fma(i): return valu(f"v_fma_f32 v{s+i}, v{s+i}, s{S_C}, -v{V_MC}", [f"v{s+i}", f"v{V_MC}"], [f"v{s+i}"])
    def ex(i): return trans(f"v_exp_f32 v{s+i}, v{s+i}", [f"v{s+i}"], [f"v{s+i}"])
    def add(i):
        l = V_L + (i & 3)
        return valu(f"v_add_f32 v{l}, v{l}, v{s+i}", [f"v{l}", f"v{s+i}"], [f"v{l}"])
    def pk(i):
        d = s + 8 * (i >> 3) + ((i & 7) >> 1)
        return valu(f"v_cvt_pk_bf16_f32 v{d}, v{s+i}, v{s+i+1}", [f"v{s+i}", f"v{s+i+1}"], [f"v{d}"])
    for i in range(19):
        if i < 16: out.append(fma(i))
        if 1 <= i <= 16: out.append(ex(i - 1))
        if 3 <= i <= 18:
            out.append(add(i - 3))
            if (i - 3) & 1: out.append(pk(i - 4))
    return out

def max16(p, kb, first):
    s = V_S[p] + 16 * kb
    out = []
    if first:
        out.append(valu(f"v_max3_f32 v{V_PM}, v{s}, v{s+1}, v{s+2}", R("v", s, 3), [f"v{V_PM}"]))
        i = 3
    else:
        i = 0
    while i + 1 < 16:
        out.append(valu(f"v_max3_f32 v{V_PM}, v{V_PM}, v{s+i}, v{s+i+1}", [f"v{V_PM}", f"v{s+i}", f"v{s+i+1}"], [f"v{V_PM}"]))
        i += 2
    if i < 16:
        out.append(valu(f"v_max_f32 v{V_PM}, v{V_PM}, v{s+i}", [f"v{V_PM}", f"v{s+i}"], [f"v{V_PM}"]))
    return out

def crosshalf_max():
    return [valu(f"v_mov_b32 v{V_TMP}, v{V_PM}", [f"v{V_PM}"], [f"v{V_TMP}"]),
            raw("s_nop 1", "nop", 1.0),
            I(f"v_permlane32_swap_b32 v{V_TMP}, v{V_PM}", "perm", [f"v{V_TMP}", f"v{V_PM}"], [f"v{V_TMP}", f"v{V_PM}"]),
            valu(f"v_max_f32 v{V_PM}, v{V_PM}, v{V_TMP}", [f"v{V_PM}", f"v{V_TMP}"], [f"v{V_PM}"])]

OOL = []

def mask_check(p, kb):
    lm = newlab(f"mask{kb}"); lr = newlab("ret")
    s = V_S[p] + 16 * kb
    t = [f"{lm}:", f"  s_lshl_b32 s{S_T0}, s{S_KT}, 6", f"  v_subrev_u32 v{V_THR}, s{S_T0}, v{V_QROW}"]
    for g in range(4):
        for r4 in range(4):
            r = 4 * g + r4
            ko = 32 * kb + 8 * g + r4
            t.append(f"  v_cmp_gt_i32 s[{S_MK+2*r4}:{S_MK+2*r4+1}], {ko}, v{V_THR}")
        for r4 in range(4):
            r = 4 * g + r4
            t.append(f"  v_cndmask_b32 v{s+r}, v{s+r}, v{V_NINF}, s[{S_MK+2*r4}:{S_MK+2*r4+1}]")
    t.append(f"  s_branch {lr}")
    OOL.extend(t)
    return [salu(f"s_cmp_ge_u32 s{S_KT}, s{S_MSK}"),
            I(f"s_cbranch_scc1 {lm}", "salu", R("v", s, 16), R("v", s, 16), 0.5),
            label(lr)]

def rare_check():
    lm = newlab("rare"); lr = newlab("ret")
    t = [f"{lm}:",
         f"  v_mov_b32 v{V_TMP}, v{V_PM}", "  s_nop 1", f"  v_permlane32_swap_b32 v{V_TMP}, v{V_PM}",
         f"  v_max3_f32 v{V_TMP}, v{V_M}, v{V_PM}, v{V_TMP}",
         f"  v_sub_f32 v{V_TMP2}, v{V_M}, v{V_TMP}",
         f"  v_mul_f32 v{V_TMP2}, s{S_C}, v{V_TMP2}",
         f"  v_exp_f32 v{V_ALPHA}, v{V_TMP2}",
         f"  v_mov_b32 v{V_M}, v{V_TMP}",
         f"  v_add_f32 v{V_MT}, {hex(f2u(TRAW))}, v{V_TMP}",
         f"  v_mul_f32 v{V_MC}, s{S_C}, v{V_TMP}"]
    for i in range(4):
        t.append(f"  v_mul_f32 v{V_L+i}, v{V_L+i}, v{V_ALPHA}")
    t += [f"  s_mov_b32 s{S_RESC}, 1", f"  s_branch {lr}"]
    OOL.extend(t)
    return [valu(f"v_cmp_gt_f32 vcc, v{V_PM}, v{V_MT}", [f"v{V_PM}", f"v{V_MT}"], ["vcc"]),
            salu(f"s_cbranch_vccnz {lm}"), label(lr)]

def resc_check():
    lm = newlab("resc"); lr = newlab("ret")
    t = [f"{lm}:", "  s_nop 15", "  s_nop 15"]
    for r0 in range(0, 128, 8):
        for i in range(8): t.append(f"  v_accvgpr_read_b32 v{V_T8+i}, a{A_O+r0+i}")
        for i in range(8): t.append(f"  v_mul_f32 v{V_T8+i}, v{V_T8+i}, v{V_ALPHA}")
        for i in range(8): t.append(f"  v_accvgpr_write_b32 a{A_O+r0+i}, v{V_T8+i}")
    t += [f"  s_mov_b32 s{S_RESC}, 0", "  s_nop 1", f"  s_branch {lr}"]
    OOL.extend(t)
    return [salu(f"s_cmp_lg_u32 s{S_RESC}, 0"), salu(f"s_cbranch_scc1 {lm}"), label(lr)]

S_HOOK = S_PUB
S_Q2OFF = 65; S_QN = 66
V_FLAG = 61 if not opt("stamps", 0) else 63
V_ML = 58
def ob_reg(g):
    if g < 16: return ("a", A_Q2 + 4 * g)
    if g < 30: return ("v", 200 + 4 * (g - 16))
    return ("v", 50 + 4 * (g - 30))
S_LINK = 96; S_PCH = 67
NPS = opt("nps", 8)
def ws_addr_lines():
    return [f"  s_lshl_b32 s{S_T0}, s{S_W}, 15", f"  s_add_u32 s{S_T0}, s{S_T0}, s{S_WSOFF}"]
def ml_addr_lines():
    return [f"  s_lshl_b32 s{S_T1}, s{S_W}, 9", f"  s_add_u32 s{S_T1}, s{S_T1}, s{S_WSOFF}", f"  s_add_u32 s{S_T1}, s{S_T1}, 0x20000",
            f"  v_lshlrev_b32 v{V_TMP2}, 3, v{V_LANE}"]
def set_touch(srd_a, srd_b):
    return [f"  s_mov_b64 s[{S_TA}:{S_TA+1}], s[{srd_a}:{srd_a+1}]", f"  s_mov_b64 s[{S_TA+2}:{S_TA+3}], s[{srd_a+2}:{srd_a+3}]",
            f"  s_mov_b64 s[{S_TB}:{S_TB+1}], s[{srd_b}:{srd_b+1}]", f"  s_mov_b64 s[{S_TB+2}:{S_TB+3}], s[{srd_b+2}:{srd_b+3}]"]
def hook_sub():
    t = ["L_hook:",
         f"  s_bitcmp1_b32 s{S_HOOK}, 0", "  s_cbranch_scc0 L_h1",
         f"  s_bitset0_b32 s{S_HOOK}, 0", f"  s_cmp_lg_u32 s{S_W}, 0", "  s_cbranch_scc1 L_h1",
         f"  v_mov_b32 v{V_TMP2}, 1", f"  v_mov_b32 v{V_THR}, 0",
         f"  s_mov_b64 s[{S_MK}:{S_MK+1}], exec", "  s_mov_b64 exec, 1",
         f"  buffer_store_byte v{V_TMP2}, v{V_THR}, s[{S_DBG}:{S_DBG+3}], s{S_PAIR} offen sc1",
         f"  s_mov_b64 exec, s[{S_MK}:{S_MK+1}]",
         "L_h1:",
         f"  s_bitcmp1_b32 s{S_HOOK}, 1", "  s_cbranch_scc0 L_h2",
         f"  s_cmp_eq_u32 s{S_TP}, 1", "  s_cbranch_scc0 L_p1",
         f"  s_lshl_b32 s{S_TAO}, s{S_R}, 15", f"  s_add_u32 s{S_TAO}, s{S_TAO}, s{S_HB}", f"  s_mov_b32 s{S_TBO}, s{S_TAO}",
         f"  s_mov_b32 s{S_TP}, 2", "  s_branch L_h2",
         "L_p1:", f"  s_cmp_eq_u32 s{S_TP}, 2", "  s_cbranch_scc0 L_p3"]
    t += set_touch(S_Q, S_Q)
    t += [f"  s_mov_b32 s{S_TAO}, s{S_Q2OFF}", f"  s_add_u32 s{S_TBO}, s{S_Q2OFF}, 0x8000", f"  s_mov_b32 s{S_TP}, 3", "  s_branch L_h2",
          "L_p3:", f"  s_mov_b32 s{S_TAO}, s{S_OOB}", f"  s_mov_b32 s{S_TBO}, s{S_OOB}", f"  s_bitset0_b32 s{S_HOOK}, 1",
          "L_h2:",
          f"  s_bitcmp1_b32 s{S_HOOK}, 2", "  s_cbranch_scc0 L_h3",
          f"  v_cmp_ne_u32 vcc, 0, v{V_FLAG}", "  s_cbranch_vccnz L_got",
          f"  v_mov_b32 v{V_THR}, 0",
          f"  buffer_load_ubyte v{V_FLAG}, v{V_THR}, s[{S_DBG}:{S_DBG+3}], s{S_PAIR} offen sc1",
          f"  s_setpc_b64 s[{S_LINK}:{S_LINK+1}]",
          "L_got:", "  buffer_inv sc1", f"  s_bitset0_b32 s{S_HOOK}, 2", f"  s_bitset1_b32 s{S_HOOK}, 4", f"  s_mov_b32 s{S_PCH}, 0"]
    t += ml_addr_lines()
    t += [f"  buffer_load_dwordx2 v[{V_ML}:{V_ML+1}], v{V_TMP2}, s[{S_WS}:{S_WS+3}], s{S_T1} offen sc1",
          "L_h3:",
          f"  s_and_b32 s{S_T1}, s{S_HOOK}, 0x18", "  s_cbranch_scc0 L_hret"]
    t += ws_addr_lines()
    nb = 32 // NPS
    for kind in ("st", "ld"):
        if kind == "st": t += [f"  s_bitcmp1_b32 s{S_HOOK}, 3", "  s_cbranch_scc0 L_ld_0"]
        for b in range(nb):
            t.append(f"L_{kind}_{b}:")
            if b < nb - 1: t += [f"  s_cmp_lg_u32 s{S_PCH}, {b}", f"  s_cbranch_scc1 L_{kind}_{b+1}"]
            for g in range(b * NPS, (b + 1) * NPS):
                p, r = ob_reg(g)
                if g % 4 == 0: t.append(f"  s_add_u32 s{S_T1}, s{S_T0}, {hex((g // 4) * 0x1000)}")
                op = "buffer_store_dwordx4" if kind == "st" else "buffer_load_dwordx4"
                t.append(f"  {op} {rs(p, r, 4)}, v{V_WS}, s[{S_WS}:{S_WS+3}], s{S_T1} offen offset:{(g&3)*1024} sc1")
            if b < nb - 1: t.append(f"  s_add_u32 s{S_PCH}, s{S_PCH}, 1")
            elif kind == "st": t += [f"  s_bitset0_b32 s{S_HOOK}, 3", f"  s_bitset1_b32 s{S_HOOK}, 0"]
            else: t.append(f"  s_bitset0_b32 s{S_HOOK}, 4")
            t.append(f"  s_setpc_b64 s[{S_LINK}:{S_LINK+1}]")
    t += ["L_hret:", f"  s_setpc_b64 s[{S_LINK}:{S_LINK+1}]"]
    return t
def pub_check():
    lr = newlab("ret")
    return [salu(f"s_cmp_lg_u32 s{S_HOOK}, 0"), salu(f"s_cbranch_scc0 {lr}"), salu(f"s_call_b64 s[{S_LINK}:{S_LINK+1}], L_hook"), label(lr)]

def dma_k(slot):
    g = []
    for q in range(8):
        grp = []
        if q in (0, 4):
            grp.append(salu(f"s_add_u32 m0, s{S_M0B}, {slot*32768 + (q>>2)*4096}"))
            grp.append(raw("s_nop 0", "nop", 0.5))
        if not NODMA:
            grp.append(I(f"buffer_load_dwordx4 v{V_DK+q}, s[{S_K}:{S_K+3}], s{S_KOFF} offen offset:{(q&3)*1024} lds", "vmem", [f"v{V_DK+q}"], [], opt("dmacost", 3.0)))
        g.append(grp)
    g.append([salu(f"s_add_u32 s{S_KF}, s{S_KF}, 1"), salu(f"s_add_u32 s{S_KOFF}, s{S_KOFF}, 0x8000"),
              salu(f"s_cmp_eq_u32 s{S_KF}, s{S_N1}"), salu(f"s_cselect_b32 s{S_KOFF}, s{S_SEG2}, s{S_KOFF}"),
              salu(f"s_cmp_ge_u32 s{S_KF}, s{S_NT}"), salu(f"s_cselect_b32 s{S_KOFF}, s{S_OOB}, s{S_KOFF}")])
    return g
def dma_v(slot):
    g = []
    for q in range(8):
        grp = []
        if q == 0:
            grp.append(salu(f"s_add_u32 s{S_VOFF2}, s{S_VOFF}, 0x1000"))
        if q in (0, 4):
            grp.append(salu(f"s_add_u32 m0, s{S_M0B}, {65536 + slot*32768 + (q>>2)*4096}"))
            grp.append(raw("s_nop 0", "nop", 0.5))
        so = S_VOFF if q < 4 else S_VOFF2
        if not NODMA:
            grp.append(I(f"buffer_load_dwordx4 v{V_DV+(q&1)}, s[{S_V}:{S_V+3}], s{so} offen offset:{(q&3)*1024} lds", "vmem", [f"v{V_DV+(q&1)}"], [], opt("dmacost", 3.0)))
        g.append(grp)
    g.append([salu(f"s_add_u32 s{S_VF}, s{S_VF}, 1"), salu(f"s_add_u32 s{S_VOFF}, s{S_VOFF}, 0x8000"),
              salu(f"s_cmp_eq_u32 s{S_VF}, s{S_N1}"), salu(f"s_cselect_b32 s{S_VOFF}, s{S_SEG2}, s{S_VOFF}"),
              salu(f"s_cmp_ge_u32 s{S_VF}, s{S_NT}"), salu(f"s_cselect_b32 s{S_VOFF}, s{S_OOB}, s{S_VOFF}")])
    return g

def schedule(mfmas, fixed, stream, pre_issued, head=()):
    n = len(mfmas)
    gc = lambda g: sum(x.cost for x in g)
    gaps = [list(fixed.get(i, [])) for i in range(n)]
    total = sum(gc(g) for gl in gaps for g in gl) + sum(gc(it[0]) for it in stream)
    per = total / n
    cum = 0.0
    si = 0
    for i in range(n):
        cum += sum(gc(g) for g in gaps[i])
        ins = []
        while si < len(stream):
            grp, e, lt = stream[si]
            if e > i: break
            c = gc(grp)
            if cum + c / 2 > per * (i + 1) and not (lt is not None and lt <= i) and i != n - 1: break
            ins.append(grp); cum += c; si += 1
        fx = gaps[i]; merged = []
        while fx or ins:
            if fx: merged.extend(fx.pop(0))
            if ins: merged.extend(ins.pop(0))
        gaps[i] = merged
    assert si == len(stream), "stream left over"
    out = list(head)
    issued = list(pre_issued); done = 0
    WGRP = opt("wgrp", 1)
    for i in range(n):
        m = mfmas[i]
        if m.need:
            need = [d for d in m.need]
            if i % WGRP == 0:
                for k in range(1, WGRP):
                    if i + k < n: need += [d for d in mfmas[i + k].need if d in issued]
            pos = max(issued.index(d) for d in need)
            if pos >= done:
                N = len(issued) - 1 - pos
                out.append(raw(f"s_waitcnt lgkmcnt({min(N,15)})", "wait", 0.5))
                done = len(issued) - min(N, 15)
        out.append(m)
        for x in gaps[i]:
            out.append(x)
            if x.kind == "ds": issued.append(x.dsid)
            if x.kind == "wait0": done = len(issued)
    return out, issued[done:]

def check_hazards(seq, name):
    if opt("novalu", 0) or opt("nods", 0): return
    seq0 = [x for x in seq if x.kind != "label"]
    seq = []
    for x in seq0:
        seq.append(x)
        if x.kind == "nop":
            for _ in range(int(x.text.split()[1])): seq.append(x)
    lastmf = {}; lastvalu = {}; lasttrans = {}; lastsrcc = {}; lastw = {}
    for i, x in enumerate(seq):
        if x.kind == "mfma" and x.text.split()[1].startswith("a["):
            for r in x.rd:
                if 64 <= int(r[1:]) < 128 and r in lastw and not lastw[r].startswith("v_cvt_pk"):
                    print(f"DEP {name}: P reg {r} last written by {lastw[r]} for {x.text}")
        for r in x.wr: lastw[r] = x.text
        isv = x.kind in ("valu", "trans", "perm")
        touch = x.rd | x.wr
        if x.kind == "mfma":
            for r in x.rd:
                if r in lastmf and i - lastmf[r] - 1 < 12: print(f"HAZ {name}: mfma->mfma AB {r} {x.text}")
                if r in lastvalu and i - lastvalu[r] - 1 < 2: print(f"HAZ {name}: valu->mfma {r} {x.text}")
            for r in x.srcc:
                if r in lastvalu and i - lastvalu[r] - 1 < 2: print(f"HAZ {name}: valu->mfma C {r} {x.text}")
            for r in x.wr - x.srcc:
                if r in lastmf and i - lastmf[r] - 1 < 12: print(f"HAZ {name}: mfma WAW {r} {x.text}")
        else:
            for r in touch:
                if r in lastmf and i - lastmf[r] - 1 < 12: print(f"HAZ {name}: mfma->other {r} dist {i-lastmf[r]-1} {x.text}")
            if isv:
                for r in x.wr:
                    if r in lastsrcc and i - lastsrcc[r] - 1 < 7: print(f"HAZ {name}: srcC WAR {r} {x.text}")
            if x.kind == "valu" or x.kind == "perm":
                for r in x.rd:
                    if r in lasttrans and i - lasttrans[r] - 1 < 1: print(f"HAZ {name}: trans->valu {r} {x.text}")
            if x.kind == "perm":
                for r in x.rd:
                    if r in lastvalu and i - lastvalu[r] - 1 < 2: print(f"HAZ {name}: valu->perm {r} {x.text}")
        if x.kind == "mfma":
            for r in x.wr: lastmf[r] = i
            for r in x.srcc: lastsrcc[r] = i
        if isv:
            for r in x.wr:
                lastvalu[r] = i
                if x.kind == "trans": lasttrans[r] = i
                else: lasttrans.pop(r, None)

PRE = [-(k + 1) for k in range(DKD)]

def k_prereads(slot):
    out = []
    for k in range(DKD):
        x = ds_k(k % NKF, k, 0, slot); x.dsid = PRE[k]; out.append(x)
    return out

def spread(groups, g0, step):
    d = {}
    for k, grp in enumerate(groups):
        d.setdefault(g0 + int(round(k * step)), []).append(grp)
    return d
def addfix(fixed, d):
    for k, v in d.items(): fixed.setdefault(k, []).extend(v)

STAMPS = opt("stamps", 0)
def stamp():
    if not STAMPS: return []
    return [raw("s_memtime s[92:93]"), raw("s_waitcnt lgkmcnt(0)", "wait"), raw("s_mov_b32 m0, s94"), raw("s_nop 0"), raw("v_writelane_b32 v60, s92, m0"), raw("s_add_u32 s94, s94, 1")]
def stamp_store():
    if not STAMPS: return []
    return txt(stamp()) + ["  s_memrealtime s[92:93]", "  s_waitcnt lgkmcnt(0)", "  v_writelane_b32 v60, s92, 63", "  s_lshl_b32 s92, s2, 12", f"  s_lshl_b32 s93, s{S_W}, 8", "  s_add_u32 s92, s92, s93", "  s_add_u32 s92, s92, 0x4000000",
            f"  v_lshlrev_b32 v61, 2, v{V_LANE}", f"  buffer_store_dword v60, v61, s[{S_WS}:{S_WS+3}], s92 offen"]
TOUCH = opt("touch", 2)
S_TA = 68; S_TB = 72; S_TAO = 76; S_TBO = 77; S_R = 78; S_TP = 79
def touch_groups():
    if not TOUCH or NODMA: return []
    return [[I(f"buffer_load_dword v{V_DUMMY}, v{V_TOUCH}, s[{S_TA}:{S_TA+3}], s{S_TAO} offen", "vmem", [], [], 2.0)],
            [I(f"buffer_load_dword v{V_DUMMY}, v{V_TOUCH}, s[{S_TB}:{S_TB+3}], s{S_TBO} offen", "vmem", [], [], 2.0)]]
V_QRB = 24; V_QDB = 62; QS = 131072
NTQ = " nt" if opt("ntq", 0) else ""
NTO = " nt" if opt("nto", 0) else ""
def q_dma(r, lbase, soff):
    g = []
    for k in range(8):
        t = V_T8 + (k & 3)
        g.append([valu(f"v_xor_b32 v{t}, {hex((4 * (k & 3)) << 4)}, v{V_QDB}", [], [f"v{t}"]),
                  salu(f"s_add_u32 m0, s{S_M0B}, {lbase + k * 1024}"),
                  salu(f"s_add_u32 s{S_T3}, s{soff}, {k * 2048 + r * 256}"),
                  I(f"buffer_load_dwordx4 v{t}, s[{S_Q}:{S_Q+3}], s{S_T3} offen{NTQ} lds", "vmem", [], [], 3.0)])
    return g
def q_reads(r, lbase):
    g = []
    for c in range(8):
        _ds[0] += 1
        t = V_T8 + 4 + (c & 3)
        d = A_Q + 4 * (8 * r + c)
        g.append([valu(f"v_xor_b32 v{t}, {hex((2 * c) << 4)}, v{V_QRB}", [], [f"v{t}"]),
                  I(f"ds_read_b128 {rs('a', d, 4)}, v{t} offset:{lbase - 98304}", "ds", [], R("a", d, 4), 1.0, dsid=_ds[0])])
    return g
def barrier_items():
    return [[raw(f"s_waitcnt vmcnt({2 if (TOUCH and not NODMA) else 0}) lgkmcnt(0)", "wait0", 0.5)], [raw("s_barrier", "bar", 1.0)] + stamp() + pub_check()]

def body(p):
    q = 1 - p
    fixed = {}; mf = []
    kid = {}
    for i in range(32):
        if i < DKD: kid[i] = PRE[i]
        else:
            x = ds_k(i % NKF, i & 15, i >> 4, q); kid[i] = x.dsid
            fixed.setdefault(i - DKD, []).append([x])
    for i in range(32):
        mf.append(mfma_qk(q, i >> 4, i & 15, i % NKF, [kid[i]]))
    for i in range(32):
        kc, db = i >> 3, i & 7
        a = ds_v(i % NVF, kc, db, 0, p); b = ds_v(i % NVF, kc, db, 1, p)
        fixed.setdefault(min(32 + i - DVD, BARG - 1), []).extend([[a], [b]])
        mf.append(mfma_pv(p, kc, db, i % NVF, [a.dsid, b.dsid]))
    dg = dma_k(p) + dma_v(q) + touch_groups()
    addfix(fixed, spread(dg, opt("dma0", 0), opt("dmastep", 2.0)))
    addfix(fixed, {BARG: barrier_items()})
    pr = k_prereads(p)
    for k in range(DKD): fixed.setdefault(64 - DKD + k, []).append([pr[k]])
    stream = []
    for x in echain(p, 1): stream.append(([x], 0, 44))
    stream.append((mask_check(q, 0), 19, None))
    for x in max16(q, 0, True): stream.append(([x], 19, None))
    stream.append((mask_check(q, 1), 35, None))
    for x in max16(q, 1, False): stream.append(([x], 35, None))
    stream.append((rare_check(), 35, None))
    stream.append(([salu(f"s_add_u32 s{S_KT}, s{S_KT}, 1")], 35, None))
    for x in echain(q, 0): stream.append(([x], 35, None))
    stream.append(([salu(f"s_sub_u32 s{S_REM}, s{S_REM}, 1")], 35, None))
    if opt("novalu", 0):
        stream = [([x for x in it[0] if x.kind == "label" or (x.kind == "salu" and "s_cmp" not in x.text and "branch" not in x.text)], it[1], it[2]) for it in stream]
        stream = [it for it in stream if it[0]]
    if opt("nods", 0):
        fixed = {g: [grp for grp in gl if grp and grp[0].kind != "ds"] for g, gl in fixed.items()}
        for m in mf: m.need = ()
    seq, left = schedule(mf, fixed, stream, PRE, head=resc_check())
    assert left == PRE or left == [] or opt("nods", 0), (left, PRE)
    return seq

def tail(p, qs=False):
    fixed = {}; mf = []
    head = [raw("s_waitcnt lgkmcnt(0)", "wait", 0.5)] + resc_check()
    pre = []
    for i in range(32):
        kc, db = i >> 3, i & 7
        a = ds_v(i % NVF, kc, db, 0, p); b = ds_v(i % NVF, kc, db, 1, p)
        if i < DVD:
            head.extend([a, b]); pre.extend([a.dsid, b.dsid])
        else:
            fixed.setdefault(min(i - DVD, BARG - 33), []).extend([[a], [b]])
        mf.append(mfma_pv(p, kc, db, i % NVF, [a.dsid, b.dsid]))
    dg = dma_k(p) + dma_v(1 - p)
    if qs:
        addfix(fixed, spread(q_dma(0, QS, S_Q2OFF), 0, 0.5))
        addfix(fixed, spread(dg, 4, 0.5))
        addfix(fixed, {13: [[raw("WAITQ", "wait", 0.5)]]})
        addfix(fixed, spread(q_reads(0, QS), 13, 0.5))
        addfix(fixed, {18: [[raw("s_waitcnt lgkmcnt(0)", "wait0", 0.5)]]})
        addfix(fixed, spread(q_dma(1, QS, S_Q2OFF) + touch_groups(), 18, 0.5))
        addfix(fixed, {BARG - 32: barrier_items()})
        addfix(fixed, spread(q_reads(1, QS), BARG - 32, 0.5))
    else:
        addfix(fixed, spread(dg + touch_groups(), 0, 1))
        addfix(fixed, {BARG - 32: barrier_items()})
    stream = []
    ec = echain(p, 1)
    for k, x in enumerate(ec): stream.append(([x], 0, 13 if k < 33 else 21))
    seq, left = schedule(mf, fixed, stream, pre, head=head)
    if qs:
        n = 0; cnt = None
        for x in seq:
            if x.text == "WAITQ":
                x.text = f"s_waitcnt vmcnt({n - 8})"; break
            if x.kind == "vmem": n += 1
        seq.append(raw("s_waitcnt lgkmcnt(0)", "wait", 0.5))
    return seq

def prologue(p, initial):
    out = []
    out.append(salu(f"s_lshl_b32 s{S_T0}, s{S_QT}, 7"))
    out.append(salu(f"s_lshl_b32 s{S_T1}, s{S_W}, 5"))
    out.append(salu(f"s_add_u32 s{S_T0}, s{S_T0}, s{S_T1}"))
    out.append(valu(f"v_and_b32 v{V_TMP}, 31, v{V_LANE}", [], [f"v{V_TMP}"]))
    out.append(valu(f"v_lshrrev_b32 v{V_TMP2}, 5, v{V_LANE}", [], [f"v{V_TMP2}"]))
    out.append(valu(f"v_lshlrev_b32 v{V_TMP2}, 2, v{V_TMP2}", [], [f"v{V_TMP2}"]))
    out.append(valu(f"v_sub_u32 v{V_TMP}, v{V_TMP}, v{V_TMP2}", [], [f"v{V_TMP}"]))
    out.append(valu(f"v_add_u32 v{V_QROW}, s{S_T0}, v{V_TMP}", [], [f"v{V_QROW}"]))
    for i in range(4): out.append(valu(f"v_mov_b32 v{V_L+i}, 0", [], [f"v{V_L+i}"]))
    out.append(salu(f"s_mov_b32 s{S_RESC}, 0"))
    out.append(salu(f"s_sub_u32 s{S_REM}, s{S_N}, 1"))
    if initial:
        out.append(raw("s_waitcnt vmcnt(0)", "wait"))
        for grp in q_reads(0, QS) + q_reads(1, 98304): out.extend(grp)
        out.append(raw("s_waitcnt lgkmcnt(0)", "wait"))
        out.append(raw("s_barrier", "bar"))
    out += stamp()
    fixed = {}; mf = []; kid = {}; pre = []
    for i in range(32):
        x = ds_k(i % NKF, i & 15, i >> 4, p); kid[i] = x.dsid
        if i < DKD: out.append(x); pre.append(x.dsid)
        else: fixed.setdefault(i - DKD, []).append([x])
        mf.append(mfma_qk(p, i >> 4, i & 15, i % NKF, [kid[i]]))
    stream = [([valu(f"v_accvgpr_write_b32 a{A_O+r}, 0", [], [f"a{A_O+r}"])], 0, None) for r in range(128)]
    if initial: addfix(fixed, spread(dma_k(1) + dma_v(0), 0, 1))
    seq, left = schedule(mf, fixed, stream, pre, head=out)
    seq.append(raw("s_waitcnt vmcnt(0) lgkmcnt(0)" if initial else "s_waitcnt lgkmcnt(0)", "wait0"))
    seq.append(raw("s_barrier", "bar"))
    seq += stamp()
    seq += k_prereads(1 - p)
    seq.append(raw("s_nop 7", "nop"))
    seq += mask_check(p, 0) + mask_check(p, 1)
    seq += max16(p, 0, True) + max16(p, 1, False) + crosshalf_max()
    seq.append(valu(f"v_mov_b32 v{V_M}, v{V_PM}", [f"v{V_PM}"], [f"v{V_M}"]))
    seq.append(valu(f"v_add_f32 v{V_MT}, {hex(f2u(TRAW))}, v{V_PM}", [f"v{V_PM}"], [f"v{V_MT}"]))
    seq.append(valu(f"v_mul_f32 v{V_MC}, s{S_C}, v{V_PM}", [f"v{V_PM}"], [f"v{V_MC}"]))
    seq.append(salu(f"s_add_u32 s{S_KT}, s{S_KT}, 1"))
    seq += echain(p, 0)
    return seq

def txt(seq):
    return [("" if x.kind == "label" else "  ") + x.text for x in seq]

def lsum_lines():
    return [f"  v_add_f32 v{V_L}, v{V_L}, v{V_L+1}", f"  v_add_f32 v{V_L+2}, v{V_L+2}, v{V_L+3}",
            f"  v_add_f32 v{V_L}, v{V_L}, v{V_L+2}"]
def crosshalf_add(reg):
    return [f"  v_mov_b32 v{V_TMP}, v{reg}", "  s_nop 1", f"  v_permlane32_swap_b32 v{V_TMP}, v{reg}",
            f"  v_add_f32 v{reg}, v{reg}, v{V_TMP}"]

def store_out(merge):
    t = [f"  s_lshl_b32 s{S_T0}, s{S_QT}, 16", f"  s_add_u32 s{S_T0}, s{S_T0}, s{S_HB}",
         f"  s_lshl_b32 s{S_T1}, s{S_W}, 14", f"  s_add_u32 s{S_T0}, s{S_T0}, s{S_T1}",
         f"  v_and_b32 v41, 31, v{V_LANE}", f"  v_lshrrev_b32 v42, 5, v{V_LANE}",
         f"  v_lshlrev_b32 v40, 9, v41", f"  v_lshl_add_u32 v40, v42, 3, v40", f"  v_add_u32 v40, s{S_T1}, v40",
         f"  v_lshlrev_b32 v41, 4, v41"]
    t += [f"  v_and_b32 v43, 31, v{V_LANE}", f"  v_xor_b32 v43, v43, v42", f"  v_lshlrev_b32 v43, 4, v43",
          f"  v_lshl_add_u32 v43, v42, 9, v43", f"  v_add_u32 v43, s{S_T1}, v43"]
    stA = []; stB = []
    for db in range(8):
        for pr in range(2):
            n = db * 2 + pr
            tb = 64 + 32 * (n & 1)
            r0 = 16 * db + 8 * pr
            A = []; B = []
            for i in range(8): A.append(f"  v_accvgpr_read_b32 v{tb+i}, a{A_O+r0+i}")
            ob = []
            if merge:
                for h in range(2):
                    p, b = ob_reg(2 * n + h)
                    if p == "a":
                        for i in range(4): A.append(f"  v_accvgpr_read_b32 v{tb+16+4*h+i}, a{b+i}")
                        b = tb + 16 + 4 * h
                    ob += [b, b + 2]
            for gsel in range(2):
                ch = 4 * db + 2 * pr + gsel
                A.append(f"  v_xor_b32 v{tb+12+gsel}, {hex(ch << 4)}, v41")
            for gsel in range(2):
                A.append(f"  v_add_u32 v{tb+12+gsel}, v{tb+12+gsel}, v40")
            for i in range(0, 8, 2):
                B.append(f"  v_pk_mul_f32 v[{tb+i}:{tb+i+1}], v[{tb+i}:{tb+i+1}], v[{V_FA}:{V_FA+1}]")
            if merge:
                for i in range(0, 8, 2):
                    b = ob[i // 2]
                    B.append(f"  v_pk_fma_f32 v[{tb+i}:{tb+i+1}], v[{b}:{b+1}], v[{V_FB}:{V_FB+1}], v[{tb+i}:{tb+i+1}]")
            for i in range(4):
                B.append(f"  v_cvt_pk_bf16_f32 v{tb+8+i}, v{tb+2*i}, v{tb+2*i+1}")
            for gsel in range(2):
                B.append(f"  ds_write_b64 v{tb+12+gsel}, v[{tb+8+2*gsel}:{tb+9+2*gsel}]")
            stA.append(A); stB.append(B)
    t += stA[0]
    for n in range(16):
        X = list(stB[n]); Y = list(stA[n + 1]) if n < 15 else []
        while X or Y:
            if X: t.append(X.pop(0))
            if Y: t.append(Y.pop(0))
    t.append("  s_waitcnt lgkmcnt(0)")
    for k in range(16):
        t.append(f"  v_xor_b32 v{128+k}, {hex((2 * k) << 4)}, v43")
        t.append(f"  ds_read_b128 v[{64+4*k}:{64+4*k+3}], v{128+k} offset:{k*1024}")
    for k in range(16):
        if k % 4 == 0 and k: t.append(f"  s_add_u32 s{S_T0}, s{S_T0}, 0x1000")
        t.append(f"  s_waitcnt lgkmcnt({15-k})")
        t.append(f"  buffer_store_dwordx4 v[{64+4*k}:{64+4*k+3}], v{V_WS}, s[{S_O}:{S_O+3}], s{S_T0} offen offset:{(k&3)*1024}{NTO}")
    return t

def main():
    L = []
    L += ["; Kernarg layout (48 bytes): q, k, v, out, debug, ws pointers (bf16 tensors 1x16x2048x256)",
          "; causal flash attention fwd: 256 WGs x 4 waves, 128 q rows per WG, split-K pairs for causal balance",
          "; @launch grid=(256,1,1) block=(256,1,1) lds=163840",
          '.amdgcn_target "amdgcn-amd-amdhsa--gfx950"', ".text", f".globl {NAME}", ".p2align 8",
          f".type {NAME},@function", f"{NAME}:"]
    a = L.append
    a("  s_cmp_ge_u32 s2, 256"); a("  s_cbranch_scc1 L_end")
    a("  s_load_dwordx4 s[80:83], s[0:1], 0"); a("  s_load_dwordx4 s[84:87], s[0:1], 16"); a("  s_load_dwordx4 s[88:91], s[0:1], 32")
    if STAMPS:
        a("  s_mov_b32 s94, 0"); a("  v_mov_b32 v60, 0"); L.extend(txt(stamp()))
        a("  s_memrealtime s[92:93]"); a("  s_waitcnt lgkmcnt(0)"); a("  v_writelane_b32 v60, s92, 62")
    a(f"  v_and_b32 v{V_LANE}, 63, v0"); a(f"  v_lshrrev_b32 v{V_TMP}, 6, v0"); a("  s_nop 0")
    a(f"  v_readfirstlane_b32 s{S_W}, v{V_TMP}")
    a(f"  s_and_b32 s{S_T0}, s2, 7"); a(f"  s_lshr_b32 s{S_T1}, s2, 3"); a(f"  s_and_b32 s{S_T2}, s{S_T1}, 1")
    a(f"  s_lshl_b32 s{S_T0}, s{S_T0}, 1"); a(f"  s_or_b32 s{S_T0}, s{S_T0}, s{S_T2}")
    a(f"  s_lshr_b32 s{S_T1}, s{S_T1}, 1")
    a(f"  s_lshl_b32 s{S_HB}, s{S_T0}, 20")
    a(f"  s_mov_b32 s{S_C}, {hex(f2u(CSCALE))}")
    a(f"  s_mov_b32 s{S_OOB}, 0x7ff00000")
    a(f"  s_mov_b32 s{S_KF}, 0"); a(f"  s_mov_b32 s{S_VF}, 0")
    a(f"  s_mov_b32 s{S_SEG2}, s{S_HB}")
    a(f"  s_lshl_b32 s{S_M0B}, s{S_W}, 13")
    a(f"  s_mov_b32 s{S_R}, s{S_T1}"); a(f"  s_mov_b32 s{S_TP}, {1 if opt('kvtouch', 1) else 2}")
    a(f"  s_add_u32 s{S_TAO}, s{S_T1}, 16"); a(f"  s_lshl_b32 s{S_TAO}, s{S_TAO}, 15"); a(f"  s_add_u32 s{S_TAO}, s{S_TAO}, s{S_HB}"); a(f"  s_mov_b32 s{S_TBO}, s{S_TAO}")
    if not opt('kvtouch', 1): a(f"  s_mov_b32 s{S_TAO}, s{S_OOB}"); a(f"  s_mov_b32 s{S_TBO}, s{S_OOB}")
    dl = [int(c) for c in opt("delta", "22100000")]
    dtab = sum(d << (2 * t) for t, d in enumerate(dl))
    a(f"  s_sub_u32 s{S_T2}, 15, s{S_T1}"); a(f"  s_min_u32 s{S_TSMALL}, s{S_T1}, s{S_T2}")
    a(f"  s_lshl_b32 s{S_T2}, s{S_TSMALL}, 1"); a(f"  s_lshr_b32 s{S_T3}, {hex(dtab)}, s{S_T2}"); a(f"  s_and_b32 s{S_T3}, s{S_T3}, 3")
    a(f"  s_sub_u32 s{S_N1}, 15, s{S_T2}"); a(f"  s_sub_u32 s{S_N1}, s{S_N1}, s{S_T3}")
    a(f"  s_cmp_lt_u32 s{S_T1}, 8"); a("  s_cbranch_scc0 L_typeA")
    a(f"  s_sub_u32 s{S_QT}, 15, s{S_T1}")
    a(f"  s_sub_u32 s{S_NT}, 17, s{S_T3}")
    a(f"  s_mov_b32 s{S_N}, s{S_N1}"); a(f"  s_mov_b32 s{S_KT}, 0"); a(f"  s_mov_b32 s{S_MSK}, 1000"); a(f"  s_mov_b32 s{S_MODE}, 0")
    a(f"  s_lshl_b32 s{S_Q2OFF}, s{S_T1}, 16"); a(f"  s_add_u32 s{S_Q2OFF}, s{S_Q2OFF}, s{S_HB}")
    a(f"  s_mov_b32 s{S_HOOK}, 2")
    a("  s_branch L_common")
    a("L_typeA:")
    a(f"  s_mov_b32 s{S_QT}, s{S_T1}")
    a(f"  s_mov_b32 s{S_KT}, s{S_N1}")
    a(f"  s_add_u32 s{S_NT}, 17, s{S_T3}")
    a(f"  s_mov_b32 s{S_N1}, s{S_NT}"); a(f"  s_mov_b32 s{S_N}, s{S_NT}"); a(f"  s_lshl_b32 s{S_MSK}, s{S_T1}, 1"); a(f"  s_mov_b32 s{S_MODE}, 2")
    a(f"  s_mov_b32 s{S_Q2OFF}, s{S_OOB}")
    a(f"  s_mov_b32 s{S_HOOK}, 6")
    a("L_common:")
    a(f"  s_lshl_b32 s{S_PAIR}, s{S_T0}, 3"); a(f"  s_add_u32 s{S_PAIR}, s{S_PAIR}, s{S_TSMALL}")
    a(f"  s_mul_i32 s{S_WSOFF}, s{S_PAIR}, 0x21000")
    a(f"  s_lshl_b32 s{S_KOFF}, s{S_KT}, 15"); a(f"  s_add_u32 s{S_KOFF}, s{S_KOFF}, s{S_HB}"); a(f"  s_mov_b32 s{S_VOFF}, s{S_KOFF}")
    a(f"  s_lshl_b32 s{S_QOFF}, s{S_QT}, 16"); a(f"  s_add_u32 s{S_QOFF}, s{S_QOFF}, s{S_HB}")
    l = V_LANE; t0 = V_T8; t1 = V_T8 + 1; t2 = V_T8 + 2; t3 = V_T8 + 3; t4 = V_T8 + 4
    a(f"  v_and_b32 v{t0}, 31, v{l}")
    a(f"  v_lshrrev_b32 v{t1}, 5, v{l}")
    a(f"  v_and_b32 v{t2}, 15, v{l}")
    a(f"  v_xor_b32 v{t4}, v{t0}, v{t1}")
    a(f"  v_lshlrev_b32 v{t4}, 4, v{t4}"); a(f"  v_lshl_add_u32 v{t4}, v{t1}, 9, v{t4}"); a(f"  v_add_u32 v{t4}, s{S_M0B}, v{t4}")
    for q in range(8):
        a(f"  v_xor_b32 v{V_DK+q}, {hex((2*q) << 4 | (q>>2)*4096)}, v{t4}")
    a(f"  v_lshrrev_b32 v{t3}, 4, v{l}"); a(f"  v_xor_b32 v{V_QDB}, v{t2}, v{t3}"); a(f"  v_lshlrev_b32 v{V_QDB}, 4, v{V_QDB}")
    a(f"  v_lshl_add_u32 v{V_QDB}, v{t3}, 9, v{V_QDB}"); a(f"  s_lshl_b32 s{S_T1}, s{S_W}, 14"); a(f"  v_add_u32 v{V_QDB}, s{S_T1}, v{V_QDB}")
    a(f"  v_xor_b32 v{V_QRB}, v{t1}, v{t2}"); a(f"  v_lshlrev_b32 v{V_QRB}, 4, v{V_QRB}"); a(f"  v_lshl_add_u32 v{V_QRB}, v{t0}, 8, v{V_QRB}")
    a(f"  s_add_u32 s{S_T1}, s{S_M0B}, 98304"); a(f"  v_add_u32 v{V_QRB}, s{S_T1}, v{V_QRB}")
    L.extend(txt(stamp()))
    a("  s_waitcnt lgkmcnt(0)")
    L.extend(txt(stamp()))
    for (srd, lo, n) in ((S_K, 82, 0x1000000), (S_Q, 80, 0x1000000)):
        a(f"  s_mov_b32 s{srd}, s{lo}"); a(f"  s_and_b32 s{srd+1}, s{lo+1}, 0xffff"); a(f"  s_mov_b32 s{srd+2}, {hex(n)}"); a(f"  s_mov_b32 s{srd+3}, 0x00020000")
    for grp in dma_k(0): L += txt(grp)
    KEEP = [f"  v_mov_b32 v{128+i}, v{V_T8+i}" for i in range(3)]
    L += KEEP
    for grp in q_dma(0, QS, S_QOFF) + q_dma(1, 98304, S_QOFF): L += txt(grp)
    L += [f"  v_mov_b32 v{V_T8+i}, v{128+i}" for i in range(3)]
    L.extend(txt(stamp()))
    for (srd, lo, n) in ((S_V, 84, 0x1000000), (S_O, 86, 0x1000000), (S_DBG, 88, 256), (S_WS, 90, 0x10000000)):
        a(f"  s_mov_b32 s{srd}, s{lo}"); a(f"  s_and_b32 s{srd+1}, s{lo+1}, 0xffff"); a(f"  s_mov_b32 s{srd+2}, {hex(n)}"); a(f"  s_mov_b32 s{srd+3}, 0x00020000")
    L += set_touch(S_K, S_V)
    a(f"  v_xor_b32 v{t3}, v{t1}, v{t2}"); a(f"  v_lshlrev_b32 v{t3}, 4, v{t3}"); a(f"  v_lshl_add_u32 v{t3}, v{t0}, 9, v{t3}")
    for c7 in range(8):
        a(f"  v_xor_b32 v{V_KA+c7}, {hex((2*c7) << 4)}, v{t3}")
    a(f"  v_lshlrev_b32 v{t3}, 2, v{t1}"); a(f"  v_xor_b32 v{t3}, v{t3}, v{t0}")
    a(f"  v_lshlrev_b32 v{t3}, 4, v{t3}"); a(f"  v_lshl_add_u32 v{t3}, v{t1}, 9, v{t3}"); a(f"  v_add_u32 v{V_DV}, s{S_M0B}, v{t3}")
    a(f"  v_xor_b32 v{V_DV+1}, 0x80, v{V_DV}")
    a(f"  v_lshrrev_b32 v{t3}, 2, v{t2}")
    a(f"  v_lshl_add_u32 v{t4}, v{t1}, 2, v{t3}")
    a(f"  v_lshlrev_b32 v{t4}, 9, v{t4}")
    a(f"  v_bfe_u32 v{t0}, v{l}, 4, 1"); a(f"  v_lshl_add_u32 v{t4}, v{t0}, 5, v{t4}")
    a(f"  v_and_b32 v{t0}, 3, v{l}"); a(f"  v_lshl_add_u32 v{t4}, v{t0}, 3, v{t4}")
    a(f"  v_add_u32 v{t4}, 0x10000, v{t4}")
    for dbl in range(4):
        a(f"  v_xor_b32 v{t0}, {dbl}, v{t3}"); a(f"  v_lshl_add_u32 v{V_VA+dbl}, v{t0}, 6, v{t4}")
    a(f"  v_lshlrev_b32 v{V_WS}, 4, v{l}")
    a(f"  v_lshlrev_b32 v{V_TOUCH}, 7, v0")
    a(f"  v_mov_b32 v{V_NINF}, 0xff800000")
    a(f"  v_mov_b32 v{V_FLAG}, 0")
    if opt("nods", 0):
        for r in range(128, 200): a(f"  v_mov_b32 v{r}, 0")
    pro_i = prologue(0, True); check_hazards(pro_i, "pro_i")
    L += txt(pro_i)
    a("L_after_pro0:")
    a(f"  s_cmp_eq_u32 s{S_REM}, 0"); a("  s_cbranch_scc1 L_tail0")
    b0 = body(0); b1 = body(1)
    check_hazards(pro_i + b0 + b1 + b0, "loop")
    a("L_body0:"); L += txt(b0)
    a("L_after_pro1:")
    a(f"  s_cmp_eq_u32 s{S_REM}, 0"); a("  s_cbranch_scc1 L_tail1")
    a("L_body1:"); L += txt(b1)
    a(f"  s_cmp_lg_u32 s{S_REM}, 0"); a("  s_cbranch_scc1 L_body0")
    t0s = tail(0); t1s = tail(1)
    check_hazards(b1 + t0s, "tail0"); check_hazards(b0 + t1s, "tail1")
    a("L_tail0:"); a(f"  s_cmp_eq_u32 s{S_MODE}, 0"); a("  s_cbranch_scc1 L_tailq0"); L += txt(t0s); a("  s_branch L_epi")
    tq0 = tail(0, True); tq1 = tail(1, True)
    check_hazards(b1 + tq0, "tailq0"); check_hazards(b0 + tq1, "tailq1")
    a("L_tailq0:"); L += txt(tq0); a("  s_branch L_epi")
    a("L_tailq1:"); L += txt(tq1); a("  s_branch L_epi")
    a("L_tail1:"); a(f"  s_cmp_eq_u32 s{S_MODE}, 0"); a("  s_cbranch_scc1 L_tailq1"); L += txt(t1s)
    a("L_epi:")
    L.extend(txt(stamp()))
    a("  s_nop 15"); a("  s_nop 15")
    L += lsum_lines()
    a(f"  s_cmp_eq_u32 s{S_MODE}, 1"); a("  s_cbranch_scc1 L_final")
    a(f"  s_cmp_eq_u32 s{S_MODE}, 2"); a("  s_cbranch_scc1 L_merge")
    L += ml_addr_lines()
    a(f"  v_mov_b32 v{V_T8}, v{V_M}"); a(f"  v_mov_b32 v{V_T8+1}, v{V_L}")
    a(f"  buffer_store_dwordx2 v[{V_T8}:{V_T8+1}], v{V_TMP2}, s[{S_WS}:{S_WS+3}], s{S_T1} offen sc1")
    a(f"  s_cmp_gt_u32 s{S_TSMALL}, {opt('tdirect', 2)}"); a("  s_cbranch_scc1 L_copy")
    L += ws_addr_lines()
    for g in range(32):
        if g and g % 4 == 0: a(f"  s_add_u32 s{S_T0}, s{S_T0}, 0x1000")
        a(f"  buffer_store_dwordx4 a[{A_O+4*g}:{A_O+4*g+3}], v{V_WS}, s[{S_WS}:{S_WS+3}], s{S_T0} offen offset:{(g&3)*1024} sc1")
    a(f"  s_bitset1_b32 s{S_HOOK}, 0")
    a("  s_branch L_sw2")
    a("L_copy:")
    for g in range(32):
        p, r = ob_reg(g)
        for i in range(4):
            a(f"  v_accvgpr_mov_b32 a{r+i}, a{A_O+4*g+i}" if p == "a" else f"  v_accvgpr_read_b32 v{r+i}, a{A_O+4*g+i}")
    a(f"  s_bitset1_b32 s{S_HOOK}, 3"); a(f"  s_mov_b32 s{S_PCH}, 0")
    a("L_sw2:")
    a(f"  s_mov_b32 s{S_QT}, s{S_TSMALL}"); a(f"  s_lshl_b32 s{S_MSK}, s{S_TSMALL}, 1"); a(f"  s_add_u32 s{S_N}, s{S_MSK}, 2")
    a(f"  s_mov_b32 s{S_KT}, 0"); a(f"  s_mov_b32 s{S_MODE}, 1")
    a(f"  s_and_b32 s{S_T0}, s{S_N1}, 1"); a(f"  s_cmp_eq_u32 s{S_T0}, 1"); a("  s_cbranch_scc1 L_pro1")
    p0 = prologue(0, False); check_hazards(p0 + b0, "pro0")
    L += txt(p0); a("  s_branch L_after_pro0")
    a("L_pro1:")
    p1 = prologue(1, False); check_hazards(p1 + b1, "pro1")
    L += txt(p1); a("  s_branch L_after_pro1")
    a("L_final:")
    a(f"  s_and_b32 s{S_HOOK}, s{S_HOOK}, 9"); a("  s_cbranch_scc0 L_final2")
    a("L_flushB:")
    a(f"  s_bitcmp1_b32 s{S_HOOK}, 3"); a("  s_cbranch_scc0 L_flushB2")
    a(f"  s_call_b64 s[{S_LINK}:{S_LINK+1}], L_hook"); a(f"  s_bitset0_b32 s{S_HOOK}, 0"); a("  s_branch L_flushB")
    a("L_flushB2:")
    a("  s_waitcnt vmcnt(0)"); a("  s_barrier"); a(f"  s_mov_b32 s{S_HOOK}, 1"); a(f"  s_call_b64 s[{S_LINK}:{S_LINK+1}], L_hook")
    a("L_final2:")
    L += crosshalf_add(V_L)
    a(f"  v_rcp_f32 v{V_FA}, v{V_L}"); a("  s_nop 0"); a(f"  v_mov_b32 v{V_FA+1}, v{V_FA}")
    if opt("twice", 0):
        a("  s_mov_b32 s95, 2"); a("L_twice:"); L.extend(txt(stamp()))
    L += store_out(False)
    if opt("twice", 0):
        a("  s_sub_u32 s95, s95, 1"); a("  s_cmp_lg_u32 s95, 0"); a("  s_cbranch_scc1 L_twice")
    L += stamp_store()
    a("  s_endpgm")
    a("L_merge:")
    a(f"  s_mov_b32 s{S_T2}, 0x400000")
    a("L_flushA:")
    a(f"  s_and_b32 s{S_HOOK}, s{S_HOOK}, 0x14"); a("  s_cbranch_scc0 L_have")
    a("  s_waitcnt vmcnt(0)")
    a(f"  s_call_b64 s[{S_LINK}:{S_LINK+1}], L_hook")
    a(f"  s_sub_u32 s{S_T2}, s{S_T2}, 1"); a(f"  s_cmp_lg_u32 s{S_T2}, 0"); a("  s_cbranch_scc1 L_flushA")
    a("L_have:")
    L.extend(txt(stamp()))
    a("  s_waitcnt vmcnt(0)")
    a(f"  v_max_f32 v{V_TMP}, v{V_M}, v{V_ML}")
    a(f"  v_sub_f32 v{V_M}, v{V_M}, v{V_TMP}"); a(f"  v_sub_f32 v{V_ML}, v{V_ML}, v{V_TMP}")
    a(f"  v_mul_f32 v{V_M}, s{S_C}, v{V_M}"); a(f"  v_mul_f32 v{V_ML}, s{S_C}, v{V_ML}")
    a(f"  v_exp_f32 v{V_M}, v{V_M}"); a(f"  v_exp_f32 v{V_ML}, v{V_ML}"); a("  s_nop 0")
    a(f"  v_mul_f32 v{V_L}, v{V_L}, v{V_M}"); a(f"  v_fma_f32 v{V_L}, v{V_ML+1}, v{V_ML}, v{V_L}")
    L += crosshalf_add(V_L)
    a(f"  v_rcp_f32 v{V_L}, v{V_L}"); a("  s_nop 0")
    a(f"  v_mul_f32 v{V_FA}, v{V_M}, v{V_L}"); a(f"  v_mul_f32 v{V_FB}, v{V_ML}, v{V_L}")
    a(f"  v_mov_b32 v{V_FA+1}, v{V_FA}"); a(f"  v_mov_b32 v{V_FB+1}, v{V_FB}")
    L += store_out(True)
    L += stamp_store()
    a("L_end:")
    a("  s_endpgm")
    L += hook_sub()
    L += OOL
    L += ['.section .rodata,"a"', ".p2align 6", f".amdhsa_kernel {NAME}",
          "  .amdhsa_next_free_vgpr 512", "  .amdhsa_next_free_sgpr 100", "  .amdhsa_accum_offset 256",
          "  .amdhsa_group_segment_fixed_size 0", "  .amdhsa_kernarg_size 48", "  .amdhsa_user_sgpr_count 2",
          "  .amdhsa_user_sgpr_kernarg_segment_ptr 1", "  .amdhsa_system_sgpr_workgroup_id_x 1", ".end_amdhsa_kernel"]
    open(OUT, "w").write("\n".join(L) + "\n")

main()
```

```python
import sys, struct, math

OUT = sys.argv[1] if len(sys.argv) > 1 else "standalone__softmax_full_causal__prompt.s"
OPT = dict(a.split("=") for a in sys.argv[2:])
def opt(name, default):
    return type(default)(OPT.get(name, default))

NAME = "standalone__softmax_full_causal__prompt_kernel"

def f2u(x):
    return struct.unpack("<I", struct.pack("<f", x))[0]

CSCALE = math.log2(math.e) / 16.0
TRAW = 8.0 / CSCALE

V_LANE = 1
V_KA = 2
V_VA = 10
V_DK = 14
V_DV = 22
V_QO = 24
V_WS = 25
V_QROW = 26
V_M = 27; V_MT = 28; V_MC = 29
V_L = 30
V_ALPHA = 34; V_PM = 35; V_TMP = 36; V_NINF = 37; V_THR = 38; V_TMP2 = 39
V_T8 = 40
V_FA = 44; V_FB = 46
V_TOUCH = 48; V_DUMMY = 49
V_S = [64, 96]
V_KF = 128; NKF = 8
V_VF = 160; NVF = 10
A_O = 0; A_Q = 128; A_Q2 = 192

S_Q, S_K, S_V, S_O, S_WS, S_DBG = 4, 8, 12, 16, 20, 24
S_W = 28; S_HB = 29; S_C = 30; S_REM = 31; S_KT = 32; S_MSK = 33
S_KOFF = 34; S_VOFF = 35; S_VOFF2 = 36; S_KF = 37; S_VF = 38; S_N1 = 39; S_SEG2 = 40; S_NT = 41
S_RESC = 42; S_PUB = 43; S_M0B = 44; S_OOB = 45; S_MODE = 48; S_QT = 49; S_N = 50; S_PAIR = 51
S_T0 = 52; S_T1 = 53; S_T2 = 54; S_T3 = 55; S_WSOFF = 46; S_QOFF = 47
S_MK = 56
S_TSMALL = 64

DKD = opt("dk", 4)
DVD = opt("dv", 6)
BARG = 63 - DKD
NODMA = opt("nodma", 0)

class I:
    __slots__ = ("text", "kind", "rd", "wr", "cost", "dsid", "need", "srcc")
    def __init__(self, text, kind, rd=(), wr=(), cost=1.0, dsid=None, need=(), srcc=()):
        self.text = text; self.kind = kind; self.rd = set(rd); self.wr = set(wr)
        self.cost = cost; self.dsid = dsid; self.need = tuple(need); self.srcc = set(srcc)

def R(p, b, n=1):
    return [f"{p}{b+i}" for i in range(n)]
def rs(p, b, n):
    return f"{p}[{b}:{b+n-1}]" if n > 1 else f"{p}{b}"

_lab = [0]
def newlab(s):
    _lab[0] += 1
    return f"L_{s}_{_lab[0]}"

def valu(text, rd, wr, cost=1.0): return I(text, "valu", rd, wr, cost)
def trans(text, rd, wr): return I(text, "trans", rd, wr, 2.0)
def salu(text, cost=0.5): return I(text, "salu", (), (), cost)
def label(l): return I(l + ":", "label", cost=0.0)
def raw(text, kind="other", cost=1.0): return I(text, kind, cost=cost)

_ds = [0]
def ds_k(frag, c, kb, slot):
    _ds[0] += 1
    d = V_KF + 4 * frag
    off = slot * 32768 + kb * 16384 + (c >> 3) * 256
    return I(f"ds_read_b128 {rs('v', d, 4)}, v{V_KA + (c & 7)} offset:{off}", "ds", [f"v{V_KA + (c & 7)}"], R("v", d, 4), 1.0, dsid=_ds[0])
def ds_v(frag, kc, db, half, slot):
    _ds[0] += 1
    d = V_VF + 4 * frag + 2 * half
    off = slot * 32768 + kc * 8192 + half * 4096 + (db >> 2) * 256
    return I(f"ds_read_b64_tr_b16 {rs('v', d, 2)}, v{V_VA + (db & 3)} offset:{off}", "ds", [f"v{V_VA + (db & 3)}"], R("v", d, 2), 1.0, dsid=_ds[0])

def mfma_qk(p, kb, c, frag, need):
    s = V_S[p] + 16 * kb
    a = V_KF + 4 * frag
    q = A_Q + 4 * c
    cc = "0" if c == 0 else rs("v", s, 16)
    rd = R("v", a, 4) + R("a", q, 4)
    return I(f"v_mfma_f32_32x32x16_bf16 {rs('v', s, 16)}, {rs('v', a, 4)}, {rs('a', q, 4)}, {cc}", "mfma",
             rd, R("v", s, 16), 2.0, need=need, srcc=([] if c == 0 else R("v", s, 16)))
def mfma_pv(p, kc, db, frag, need):
    pb = V_S[p] + 16 * (kc >> 1) + 8 * (kc & 1)
    a = V_VF + 4 * frag
    o = A_O + 16 * db
    return I(f"v_mfma_f32_32x32x16_bf16 {rs('a', o, 16)}, {rs('v', a, 4)}, {rs('v', pb, 4)}, {rs('a', o, 16)}", "mfma",
             R("v", a, 4) + R("v", pb, 4), R("a", o, 16), 2.0, need=need, srcc=R("a", o, 16))

def echain(p, kb):
    s = V_S[p] + 16 * kb
    out = []
    def fma(i): return valu(f"v_fma_f32 v{s+i}, v{s+i}, s{S_C}, -v{V_MC}", [f"v{s+i}", f"v{V_MC}"], [f"v{s+i}"])
    def ex(i): return trans(f"v_exp_f32 v{s+i}, v{s+i}", [f"v{s+i}"], [f"v{s+i}"])
    def add(i):
        l = V_L + (i & 3)
        return valu(f"v_add_f32 v{l}, v{l}, v{s+i}", [f"v{l}", f"v{s+i}"], [f"v{l}"])
    def pk(i):
        d = s + 8 * (i >> 3) + ((i & 7) >> 1)
        return valu(f"v_cvt_pk_bf16_f32 v{d}, v{s+i}, v{s+i+1}", [f"v{s+i}", f"v{s+i+1}"], [f"v{d}"])
    for i in range(19):
        if i < 16: out.append(fma(i))
        if 1 <= i <= 16: out.append(ex(i - 1))
        if 3 <= i <= 18:
            out.append(add(i - 3))
            if (i - 3) & 1: out.append(pk(i - 4))
    return out

def max16(p, kb, first):
    s = V_S[p] + 16 * kb
    out = []
    if first:
        out.append(valu(f"v_max3_f32 v{V_PM}, v{s}, v{s+1}, v{s+2}", R("v", s, 3), [f"v{V_PM}"]))
        i = 3
    else:
        i = 0
    while i + 1 < 16:
        out.append(valu(f"v_max3_f32 v{V_PM}, v{V_PM}, v{s+i}, v{s+i+1}", [f"v{V_PM}", f"v{s+i}", f"v{s+i+1}"], [f"v{V_PM}"]))
        i += 2
    if i < 16:
        out.append(valu(f"v_max_f32 v{V_PM}, v{V_PM}, v{s+i}", [f"v{V_PM}", f"v{s+i}"], [f"v{V_PM}"]))
    return out

def crosshalf_max():
    return [valu(f"v_mov_b32 v{V_TMP}, v{V_PM}", [f"v{V_PM}"], [f"v{V_TMP}"]),
            raw("s_nop 1", "nop", 1.0),
            I(f"v_permlane32_swap_b32 v{V_TMP}, v{V_PM}", "perm", [f"v{V_TMP}", f"v{V_PM}"], [f"v{V_TMP}", f"v{V_PM}"]),
            valu(f"v_max_f32 v{V_PM}, v{V_PM}, v{V_TMP}", [f"v{V_PM}", f"v{V_TMP}"], [f"v{V_PM}"])]

OOL = []

def mask_check(p, kb):
    lm = newlab(f"mask{kb}"); lr = newlab("ret")
    s = V_S[p] + 16 * kb
    t = [f"{lm}:", f"  s_lshl_b32 s{S_T0}, s{S_KT}, 6", f"  v_subrev_u32 v{V_THR}, s{S_T0}, v{V_QROW}"]
    for g in range(4):
        for r4 in range(4):
            r = 4 * g + r4
            ko = 32 * kb + 8 * g + r4
            t.append(f"  v_cmp_gt_i32 s[{S_MK+2*r4}:{S_MK+2*r4+1}], {ko}, v{V_THR}")
        for r4 in range(4):
            r = 4 * g + r4
            t.append(f"  v_cndmask_b32 v{s+r}, v{s+r}, v{V_NINF}, s[{S_MK+2*r4}:{S_MK+2*r4+1}]")
    t.append(f"  s_branch {lr}")
    OOL.extend(t)
    return [salu(f"s_cmp_ge_u32 s{S_KT}, s{S_MSK}"),
            I(f"s_cbranch_scc1 {lm}", "salu", R("v", s, 16), R("v", s, 16), 0.5),
            label(lr)]

def rare_check():
    lm = newlab("rare"); lr = newlab("ret")
    t = [f"{lm}:",
         f"  v_mov_b32 v{V_TMP}, v{V_PM}", "  s_nop 1", f"  v_permlane32_swap_b32 v{V_TMP}, v{V_PM}",
         f"  v_max3_f32 v{V_TMP}, v{V_M}, v{V_PM}, v{V_TMP}",
         f"  v_sub_f32 v{V_TMP2}, v{V_M}, v{V_TMP}",
         f"  v_mul_f32 v{V_TMP2}, s{S_C}, v{V_TMP2}",
         f"  v_exp_f32 v{V_ALPHA}, v{V_TMP2}",
         f"  v_mov_b32 v{V_M}, v{V_TMP}",
         f"  v_add_f32 v{V_MT}, {hex(f2u(TRAW))}, v{V_TMP}",
         f"  v_mul_f32 v{V_MC}, s{S_C}, v{V_TMP}"]
    for i in range(4):
        t.append(f"  v_mul_f32 v{V_L+i}, v{V_L+i}, v{V_ALPHA}")
    t += [f"  s_mov_b32 s{S_RESC}, 1", f"  s_branch {lr}"]
    OOL.extend(t)
    return [valu(f"v_cmp_gt_f32 vcc, v{V_PM}, v{V_MT}", [f"v{V_PM}", f"v{V_MT}"], ["vcc"]),
            salu(f"s_cbranch_vccnz {lm}"), label(lr)]

def resc_check():
    lm = newlab("resc"); lr = newlab("ret")
    t = [f"{lm}:", "  s_nop 15", "  s_nop 15"]
    for r0 in range(0, 128, 8):
        for i in range(8): t.append(f"  v_accvgpr_read_b32 v{V_T8+i}, a{A_O+r0+i}")
        for i in range(8): t.append(f"  v_mul_f32 v{V_T8+i}, v{V_T8+i}, v{V_ALPHA}")
        for i in range(8): t.append(f"  v_accvgpr_write_b32 a{A_O+r0+i}, v{V_T8+i}")
    t += [f"  s_mov_b32 s{S_RESC}, 0", "  s_nop 1", f"  s_branch {lr}"]
    OOL.extend(t)
    return [salu(f"s_cmp_lg_u32 s{S_RESC}, 0"), salu(f"s_cbranch_scc1 {lm}"), label(lr)]

S_HOOK = S_PUB
S_Q2OFF = 65; S_KTJ = 66
V_FLAG = 61 if not opt("stamps", 0) else 63
V_ML = 58
def ob_reg(g):
    return ("v", 200 + 4 * g) if g < 14 else ("v", 50 + 4 * (g - 14))
NCH = 16
S_LINK = 96; S_PCH = 67
NPS = opt("nps", 4)
def ws_addr_lines():
    return [f"  s_lshl_b32 s{S_T0}, s{S_W}, 14", f"  s_add_u32 s{S_T0}, s{S_T0}, s{S_WSOFF}"]
def ml_addr_lines():
    return [f"  s_lshl_b32 s{S_T1}, s{S_W}, 9", f"  s_add_u32 s{S_T1}, s{S_T1}, s{S_WSOFF}", f"  s_add_u32 s{S_T1}, s{S_T1}, 0x20000",
            f"  v_lshlrev_b32 v{V_TMP2}, 3, v{V_LANE}"]
def set_touch(srd_a, srd_b):
    return [f"  s_mov_b64 s[{S_TA}:{S_TA+1}], s[{srd_a}:{srd_a+1}]", f"  s_mov_b64 s[{S_TA+2}:{S_TA+3}], s[{srd_a+2}:{srd_a+3}]",
            f"  s_mov_b64 s[{S_TB}:{S_TB+1}], s[{srd_b}:{srd_b+1}]", f"  s_mov_b64 s[{S_TB+2}:{S_TB+3}], s[{srd_b+2}:{srd_b+3}]"]
def hook_sub():
    t = ["L_hook:",
         f"  s_bitcmp1_b32 s{S_HOOK}, 0", "  s_cbranch_scc0 L_h1",
         f"  s_bitset0_b32 s{S_HOOK}, 0", f"  s_cmp_lg_u32 s{S_W}, 0", "  s_cbranch_scc1 L_h1",
         f"  v_mov_b32 v{V_TMP2}, 1", f"  v_mov_b32 v{V_THR}, 0",
         f"  s_mov_b64 s[{S_MK}:{S_MK+1}], exec", "  s_mov_b64 exec, 1",
         f"  buffer_store_byte v{V_TMP2}, v{V_THR}, s[{S_DBG}:{S_DBG+3}], s{S_PAIR} offen sc1",
         f"  s_mov_b64 exec, s[{S_MK}:{S_MK+1}]",
         "L_h1:",
         f"  s_bitcmp1_b32 s{S_HOOK}, 1", "  s_cbranch_scc0 L_h2",
         f"  s_cmp_eq_u32 s{S_TP}, 1", "  s_cbranch_scc0 L_p1",
         f"  s_lshl_b32 s{S_TAO}, s{S_R}, 15", f"  s_add_u32 s{S_TAO}, s{S_TAO}, s{S_HB}", f"  s_mov_b32 s{S_TBO}, s{S_TAO}",
         f"  s_mov_b32 s{S_TP}, 2", "  s_branch L_h2",
         "L_p1:", f"  s_cmp_eq_u32 s{S_TP}, 2", "  s_cbranch_scc0 L_p3"]
    t += set_touch(S_Q, S_Q)
    t += [f"  s_mov_b32 s{S_TAO}, s{S_Q2OFF}", f"  s_add_u32 s{S_TBO}, s{S_Q2OFF}, 0x8000", f"  s_mov_b32 s{S_TP}, 3", "  s_branch L_h2",
          "L_p3:", f"  s_mov_b32 s{S_TAO}, s{S_OOB}", f"  s_mov_b32 s{S_TBO}, s{S_OOB}", f"  s_bitset0_b32 s{S_HOOK}, 1",
          "L_h2:",
          f"  s_bitcmp1_b32 s{S_HOOK}, 2", "  s_cbranch_scc0 L_h3",
          f"  v_cmp_ne_u32 vcc, 0, v{V_FLAG}", "  s_cbranch_vccnz L_got",
          f"  v_mov_b32 v{V_THR}, 0",
          f"  buffer_load_ubyte v{V_FLAG}, v{V_THR}, s[{S_DBG}:{S_DBG+3}], s{S_PAIR} offen sc1",
          f"  s_setpc_b64 s[{S_LINK}:{S_LINK+1}]",
          "L_got:", "  buffer_inv sc1", f"  s_bitset0_b32 s{S_HOOK}, 2", f"  s_bitset1_b32 s{S_HOOK}, 4", f"  s_mov_b32 s{S_PCH}, 0"]
    t += ml_addr_lines()
    t += [f"  buffer_load_dwordx2 v[{V_ML}:{V_ML+1}], v{V_TMP2}, s[{S_WS}:{S_WS+3}], s{S_T1} offen sc1",
          "L_h3:",
          f"  s_and_b32 s{S_T1}, s{S_HOOK}, 0x18", "  s_cbranch_scc0 L_hret"]
    t += ws_addr_lines()
    nb = NCH // NPS
    for kind in ("st", "ld"):
        if kind == "st": t += [f"  s_bitcmp1_b32 s{S_HOOK}, 3", "  s_cbranch_scc0 L_ld_0"]
        for b in range(nb):
            t.append(f"L_{kind}_{b}:")
            if b < nb - 1: t += [f"  s_cmp_lg_u32 s{S_PCH}, {b}", f"  s_cbranch_scc1 L_{kind}_{b+1}"]
            for g in range(b * NPS, (b + 1) * NPS):
                p, r = ob_reg(g)
                if g % 4 == 0: t.append(f"  s_add_u32 s{S_T1}, s{S_T0}, {hex((g // 4) * 0x1000)}")
                op = "buffer_store_dwordx4" if kind == "st" else "buffer_load_dwordx4"
                t.append(f"  {op} {rs(p, r, 4)}, v{V_WS}, s[{S_WS}:{S_WS+3}], s{S_T1} offen offset:{(g&3)*1024} sc1")
            if b < nb - 1: t.append(f"  s_add_u32 s{S_PCH}, s{S_PCH}, 1")
            elif kind == "st": t += [f"  s_bitset0_b32 s{S_HOOK}, 3", f"  s_bitset1_b32 s{S_HOOK}, 0"]
            else: t.append(f"  s_bitset0_b32 s{S_HOOK}, 4")
            t.append(f"  s_setpc_b64 s[{S_LINK}:{S_LINK+1}]")
    t += ["L_hret:", f"  s_setpc_b64 s[{S_LINK}:{S_LINK+1}]"]
    return t
def pub_check():
    lr = newlab("ret")
    return [salu(f"s_cmp_lg_u32 s{S_HOOK}, 0"), salu(f"s_cbranch_scc0 {lr}"), salu(f"s_call_b64 s[{S_LINK}:{S_LINK+1}], L_hook"), label(lr)]

def dma_k(slot):
    g = []
    for q in range(8):
        grp = []
        if q in (0, 4):
            grp.append(salu(f"s_add_u32 m0, s{S_M0B}, {slot*32768 + (q>>2)*4096}"))
            grp.append(raw("s_nop 0", "nop", 0.5))
        if not NODMA:
            grp.append(I(f"buffer_load_dwordx4 v{V_DK+q}, s[{S_K}:{S_K+3}], s{S_KOFF} offen offset:{(q&3)*1024} lds", "vmem", [f"v{V_DK+q}"], [], opt("dmacost", 3.0)))
        g.append(grp)
    g.append([salu(f"s_add_u32 s{S_KF}, s{S_KF}, 1"), salu(f"s_add_u32 s{S_KOFF}, s{S_KOFF}, 0x8000"),
              salu(f"s_cmp_eq_u32 s{S_KF}, s{S_N1}"), salu(f"s_cselect_b32 s{S_KOFF}, s{S_SEG2}, s{S_KOFF}"),
              salu(f"s_cmp_ge_u32 s{S_KF}, s{S_NT}"), salu(f"s_cselect_b32 s{S_KOFF}, s{S_OOB}, s{S_KOFF}")])
    return g
def dma_v(slot):
    g = []
    for q in range(8):
        grp = []
        if q == 0:
            grp.append(salu(f"s_add_u32 s{S_VOFF2}, s{S_VOFF}, 0x1000"))
        if q in (0, 4):
            grp.append(salu(f"s_add_u32 m0, s{S_M0B}, {65536 + slot*32768 + (q>>2)*4096}"))
            grp.append(raw("s_nop 0", "nop", 0.5))
        so = S_VOFF if q < 4 else S_VOFF2
        if not NODMA:
            grp.append(I(f"buffer_load_dwordx4 v{V_DV+(q&1)}, s[{S_V}:{S_V+3}], s{so} offen offset:{(q&3)*1024} lds", "vmem", [f"v{V_DV+(q&1)}"], [], opt("dmacost", 3.0)))
        g.append(grp)
    g.append([salu(f"s_add_u32 s{S_VF}, s{S_VF}, 1"), salu(f"s_add_u32 s{S_VOFF}, s{S_VOFF}, 0x8000"),
              salu(f"s_cmp_eq_u32 s{S_VF}, s{S_N1}"), salu(f"s_cselect_b32 s{S_VOFF}, s{S_SEG2}, s{S_VOFF}"),
              salu(f"s_cmp_ge_u32 s{S_VF}, s{S_NT}"), salu(f"s_cselect_b32 s{S_VOFF}, s{S_OOB}, s{S_VOFF}")])
    return g

def schedule(mfmas, fixed, stream, pre_issued, head=()):
    n = len(mfmas)
    gc = lambda g: sum(x.cost for x in g)
    gaps = [list(fixed.get(i, [])) for i in range(n)]
    total = sum(gc(g) for gl in gaps for g in gl) + sum(gc(it[0]) for it in stream)
    per = total / n
    cum = 0.0
    si = 0
    for i in range(n):
        cum += sum(gc(g) for g in gaps[i])
        ins = []
        while si < len(stream):
            grp, e, lt = stream[si]
            if e > i: break
            c = gc(grp)
            if cum + c / 2 > per * (i + 1) and not (lt is not None and lt <= i) and i != n - 1: break
            ins.append(grp); cum += c; si += 1
        fx = gaps[i]; merged = []
        while fx or ins:
            if fx: merged.extend(fx.pop(0))
            if ins: merged.extend(ins.pop(0))
        gaps[i] = merged
    assert si == len(stream), "stream left over"
    out = list(head)
    issued = list(pre_issued); done = 0
    WGRP = opt("wgrp", 1)
    for i in range(n):
        m = mfmas[i]
        if m.need:
            need = [d for d in m.need]
            if i % WGRP == 0:
                for k in range(1, WGRP):
                    if i + k < n: need += [d for d in mfmas[i + k].need if d in issued]
            pos = max(issued.index(d) for d in need)
            if pos >= done:
                N = len(issued) - 1 - pos
                out.append(raw(f"s_waitcnt lgkmcnt({min(N,15)})", "wait", 0.5))
                done = len(issued) - min(N, 15)
        out.append(m)
        for x in gaps[i]:
            out.append(x)
            if x.kind == "ds": issued.append(x.dsid)
            if x.kind == "wait0": done = len(issued)
    return out, issued[done:]

def check_hazards(seq, name):
    if opt("novalu", 0) or opt("nods", 0): return
    seq0 = [x for x in seq if x.kind != "label"]
    seq = []
    for x in seq0:
        seq.append(x)
        if x.kind == "nop":
            for _ in range(int(x.text.split()[1])): seq.append(x)
    lastmf = {}; lastvalu = {}; lasttrans = {}; lastsrcc = {}; lastw = {}
    for i, x in enumerate(seq):
        if x.kind == "mfma" and x.text.split()[1].startswith("a["):
            for r in x.rd:
                if 64 <= int(r[1:]) < 128 and r in lastw and not lastw[r].startswith("v_cvt_pk"):
                    print(f"DEP {name}: P reg {r} last written by {lastw[r]} for {x.text}")
        for r in x.wr: lastw[r] = x.text
        isv = x.kind in ("valu", "trans", "perm")
        touch = x.rd | x.wr
        if x.kind == "mfma":
            for r in x.rd:
                if r in lastmf and i - lastmf[r] - 1 < 12: print(f"HAZ {name}: mfma->mfma AB {r} {x.text}")
                if r in lastvalu and i - lastvalu[r] - 1 < 2: print(f"HAZ {name}: valu->mfma {r} {x.text}")
            for r in x.srcc:
                if r in lastvalu and i - lastvalu[r] - 1 < 2: print(f"HAZ {name}: valu->mfma C {r} {x.text}")
            for r in x.wr - x.srcc:
                if r in lastmf and i - lastmf[r] - 1 < 12: print(f"HAZ {name}: mfma WAW {r} {x.text}")
        else:
            for r in touch:
                if r in lastmf and i - lastmf[r] - 1 < 12: print(f"HAZ {name}: mfma->other {r} dist {i-lastmf[r]-1} {x.text}")
            if isv:
                for r in x.wr:
                    if r in lastsrcc and i - lastsrcc[r] - 1 < 7: print(f"HAZ {name}: srcC WAR {r} {x.text}")
            if x.kind == "valu" or x.kind == "perm":
                for r in x.rd:
                    if r in lasttrans and i - lasttrans[r] - 1 < 1: print(f"HAZ {name}: trans->valu {r} {x.text}")
            if x.kind == "perm":
                for r in x.rd:
                    if r in lastvalu and i - lastvalu[r] - 1 < 2: print(f"HAZ {name}: valu->perm {r} {x.text}")
        if x.kind == "mfma":
            for r in x.wr: lastmf[r] = i
            for r in x.srcc: lastsrcc[r] = i
        if isv:
            for r in x.wr:
                lastvalu[r] = i
                if x.kind == "trans": lasttrans[r] = i
                else: lasttrans.pop(r, None)

PRE = [-(k + 1) for k in range(DKD)]

def k_prereads(slot):
    out = []
    for k in range(DKD):
        x = ds_k(k % NKF, k, 0, slot); x.dsid = PRE[k]; out.append(x)
    return out

def spread(groups, g0, step):
    d = {}
    for k, grp in enumerate(groups):
        d.setdefault(g0 + int(round(k * step)), []).append(grp)
    return d
def addfix(fixed, d):
    for k, v in d.items(): fixed.setdefault(k, []).extend(v)

STAMPS = opt("stamps", 0)
def stamp():
    if not STAMPS: return []
    return [raw("s_memtime s[92:93]"), raw("s_waitcnt lgkmcnt(0)", "wait"), raw("s_mov_b32 m0, s94"), raw("s_nop 0"), raw("v_writelane_b32 v60, s92, m0"), raw("s_add_u32 s94, s94, 1")]
def stamp_store():
    if not STAMPS: return []
    return txt(stamp()) + ["  s_memrealtime s[92:93]", "  s_waitcnt lgkmcnt(0)", "  v_writelane_b32 v60, s92, 63", "  s_lshl_b32 s92, s2, 12", f"  s_lshl_b32 s93, s{S_W}, 8", "  s_add_u32 s92, s92, s93", "  s_add_u32 s92, s92, 0x4000000",
            f"  v_lshlrev_b32 v61, 2, v{V_LANE}", f"  buffer_store_dword v60, v61, s[{S_WS}:{S_WS+3}], s92 offen"]
TOUCH = opt("touch", 2)
S_TA = 68; S_TB = 72; S_TAO = 76; S_TBO = 77; S_R = 78; S_TP = 79
LOOK = opt("look", 0)
def touch_groups():
    if not TOUCH or NODMA: return []
    if LOOK:
        return [[salu(f"s_add_u32 s{S_TAO}, s{S_KOFF}, {hex((LOOK-1)*0x8000)}"),
                 I(f"buffer_load_dword v{V_DUMMY}, v{V_TOUCH}, s[{S_K}:{S_K+3}], s{S_TAO} offen", "vmem", [], [], 2.0)],
                [salu(f"s_add_u32 s{S_TBO}, s{S_VOFF}, {hex((LOOK-1)*0x8000)}"),
                 I(f"buffer_load_dword v{V_DUMMY}, v{V_TOUCH}, s[{S_V}:{S_V+3}], s{S_TBO} offen", "vmem", [], [], 2.0)]]
    return [[I(f"buffer_load_dword v{V_DUMMY}, v{V_TOUCH}, s[{S_TA}:{S_TA+3}], s{S_TAO} offen", "vmem", [], [], 2.0)],
            [I(f"buffer_load_dword v{V_DUMMY}, v{V_TOUCH}, s[{S_TB}:{S_TB+3}], s{S_TBO} offen", "vmem", [], [], 2.0)]]
V_QRB = 24; V_QDB = 62; QS = 131072
NTQ = " nt" if opt("ntq", 0) else ""
NTO = " nt" if opt("nto", 0) else ""
def q_dma(r, lbase, soff):
    g = []
    for k in range(8):
        t = V_T8 + (k & 3)
        g.append([valu(f"v_xor_b32 v{t}, {hex((4 * (k & 3)) << 4)}, v{V_QDB}", [], [f"v{t}"]),
                  salu(f"s_add_u32 m0, s{S_M0B}, {lbase + k * 1024}"),
                  salu(f"s_add_u32 s{S_T3}, s{soff}, {k * 2048 + r * 256}"),
                  I(f"buffer_load_dwordx4 v{t}, s[{S_Q}:{S_Q+3}], s{S_T3} offen{NTQ} lds", "vmem", [], [], 3.0)])
    return g
def q_reads(r, lbase):
    g = []
    for c in range(8):
        _ds[0] += 1
        t = V_T8 + 4 + (c & 3)
        d = A_Q + 4 * (8 * r + c)
        g.append([valu(f"v_xor_b32 v{t}, {hex((2 * c) << 4)}, v{V_QRB}", [], [f"v{t}"]),
                  I(f"ds_read_b128 {rs('a', d, 4)}, v{t} offset:{lbase - 98304}", "ds", [], R("a", d, 4), 1.0, dsid=_ds[0])])
    return g
def barrier_items():
    return [[raw(f"s_waitcnt vmcnt({2 if (TOUCH and not NODMA) else 0}) lgkmcnt(0)", "wait0", 0.5)], [raw("s_barrier", "bar", 1.0)] + stamp() + pub_check()]

def body(p):
    q = 1 - p
    fixed = {}; mf = []
    kid = {}
    for i in range(32):
        if i < DKD: kid[i] = PRE[i]
        else:
            x = ds_k(i % NKF, i & 15, i >> 4, q); kid[i] = x.dsid
            fixed.setdefault(i - DKD, []).append([x])
    for i in range(32):
        mf.append(mfma_qk(q, i >> 4, i & 15, i % NKF, [kid[i]]))
    for i in range(32):
        kc, db = i >> 3, i & 7
        a = ds_v(i % NVF, kc, db, 0, p); b = ds_v(i % NVF, kc, db, 1, p)
        fixed.setdefault(min(32 + i - DVD, BARG - 1), []).extend([[a], [b]])
        mf.append(mfma_pv(p, kc, db, i % NVF, [a.dsid, b.dsid]))
    dg = dma_k(p) + dma_v(q) + touch_groups()
    addfix(fixed, spread(dg, opt("dma0", 0), opt("dmastep", 2.0)))
    addfix(fixed, {BARG: barrier_items()})
    pr = k_prereads(p)
    for k in range(DKD): fixed.setdefault(64 - DKD + k, []).append([pr[k]])
    stream = []
    for x in echain(p, 1): stream.append(([x], 0, 44))
    stream.append((mask_check(q, 0), 19, None))
    for x in max16(q, 0, True): stream.append(([x], 19, None))
    stream.append((mask_check(q, 1), 35, None))
    for x in max16(q, 1, False): stream.append(([x], 35, None))
    stream.append((rare_check(), 35, None))
    stream.append(([salu(f"s_add_u32 s{S_KT}, s{S_KT}, 1"), salu(f"s_cmp_eq_u32 s{S_KT}, s{S_KTJ}"), salu(f"s_cselect_b32 s{S_KT}, 0, s{S_KT}")], 35, None))
    for x in echain(q, 0): stream.append(([x], 35, None))
    stream.append(([salu(f"s_sub_u32 s{S_REM}, s{S_REM}, 1")], 35, None))
    if opt("novalu", 0):
        stream = [([x for x in it[0] if x.kind == "label" or (x.kind == "salu" and "s_cmp" not in x.text and "branch" not in x.text)], it[1], it[2]) for it in stream]
        stream = [it for it in stream if it[0]]
    if opt("nods", 0):
        fixed = {g: [grp for grp in gl if grp and grp[0].kind != "ds"] for g, gl in fixed.items()}
        for m in mf: m.need = ()
    seq, left = schedule(mf, fixed, stream, PRE, head=resc_check())
    assert left == PRE or left == [] or opt("nods", 0), (left, PRE)
    return seq

def tail(p, qs=False):
    fixed = {}; mf = []
    head = [raw("s_waitcnt lgkmcnt(0)", "wait", 0.5)] + resc_check()
    pre = []
    for i in range(32):
        kc, db = i >> 3, i & 7
        a = ds_v(i % NVF, kc, db, 0, p); b = ds_v(i % NVF, kc, db, 1, p)
        if i < DVD:
            head.extend([a, b]); pre.extend([a.dsid, b.dsid])
        else:
            fixed.setdefault(min(i - DVD, BARG - 33), []).extend([[a], [b]])
        mf.append(mfma_pv(p, kc, db, i % NVF, [a.dsid, b.dsid]))
    dg = dma_k(p) + dma_v(1 - p)
    if qs:
        addfix(fixed, spread(q_dma(0, QS, S_Q2OFF), 0, 0.5))
        addfix(fixed, spread(dg, 4, 0.5))
        addfix(fixed, {13: [[raw("WAITQ", "wait", 0.5)]]})
        addfix(fixed, spread(q_reads(0, QS), 13, 0.5))
        addfix(fixed, {18: [[raw("s_waitcnt lgkmcnt(0)", "wait0", 0.5)]]})
        addfix(fixed, spread(q_dma(1, QS, S_Q2OFF) + touch_groups(), 18, 0.5))
        addfix(fixed, {BARG - 32: barrier_items()})
        addfix(fixed, spread(q_reads(1, QS), BARG - 32, 0.5))
    else:
        addfix(fixed, spread(dg + touch_groups(), 0, 1))
        addfix(fixed, {BARG - 32: barrier_items()})
    stream = []
    ec = echain(p, 1)
    for k, x in enumerate(ec): stream.append(([x], 0, 13 if k < 33 else 21))
    seq, left = schedule(mf, fixed, stream, pre, head=head)
    if qs:
        n = 0; cnt = None
        for x in seq:
            if x.text == "WAITQ":
                x.text = f"s_waitcnt vmcnt({n - 8})"; break
            if x.kind == "vmem": n += 1
        seq.append(raw("s_waitcnt lgkmcnt(0)", "wait", 0.5))
    return seq

def prologue(p, initial):
    out = []
    out.append(salu(f"s_lshl_b32 s{S_T0}, s{S_QT}, 7"))
    out.append(salu(f"s_lshl_b32 s{S_T1}, s{S_W}, 5"))
    out.append(salu(f"s_add_u32 s{S_T0}, s{S_T0}, s{S_T1}"))
    out.append(valu(f"v_and_b32 v{V_TMP}, 31, v{V_LANE}", [], [f"v{V_TMP}"]))
    out.append(valu(f"v_lshrrev_b32 v{V_TMP2}, 5, v{V_LANE}", [], [f"v{V_TMP2}"]))
    out.append(valu(f"v_lshlrev_b32 v{V_TMP2}, 2, v{V_TMP2}", [], [f"v{V_TMP2}"]))
    out.append(valu(f"v_sub_u32 v{V_TMP}, v{V_TMP}, v{V_TMP2}", [], [f"v{V_TMP}"]))
    out.append(valu(f"v_add_u32 v{V_QROW}, s{S_T0}, v{V_TMP}", [], [f"v{V_QROW}"]))
    for i in range(4): out.append(valu(f"v_mov_b32 v{V_L+i}, 0", [], [f"v{V_L+i}"]))
    out.append(salu(f"s_mov_b32 s{S_RESC}, 0"))
    out.append(salu(f"s_sub_u32 s{S_REM}, s{S_N}, 1"))
    if initial:
        out.append(raw("s_waitcnt vmcnt(0)", "wait"))
        for grp in q_reads(0, QS) + q_reads(1, 98304): out.extend(grp)
        out.append(raw("s_waitcnt lgkmcnt(0)", "wait"))
        out.append(raw("s_barrier", "bar"))
    out += stamp()
    fixed = {}; mf = []; kid = {}; pre = []
    for i in range(32):
        x = ds_k(i % NKF, i & 15, i >> 4, p); kid[i] = x.dsid
        if i < DKD: out.append(x); pre.append(x.dsid)
        else: fixed.setdefault(i - DKD, []).append([x])
        mf.append(mfma_qk(p, i >> 4, i & 15, i % NKF, [kid[i]]))
    stream = [([valu(f"v_accvgpr_write_b32 a{A_O+r}, 0", [], [f"a{A_O+r}"])], 0, None) for r in range(128)]
    if initial: addfix(fixed, spread(dma_k(1) + dma_v(0), 0, 1))
    seq, left = schedule(mf, fixed, stream, pre, head=out)
    seq.append(raw("s_waitcnt vmcnt(0) lgkmcnt(0)", "wait0"))
    seq.append(raw("s_barrier", "bar"))
    seq += stamp()
    if not initial: seq += pub_check()
    seq += k_prereads(1 - p)
    seq.append(raw("s_nop 7", "nop"))
    seq += mask_check(p, 0) + mask_check(p, 1)
    seq += max16(p, 0, True) + max16(p, 1, False) + crosshalf_max()
    seq.append(valu(f"v_mov_b32 v{V_M}, v{V_PM}", [f"v{V_PM}"], [f"v{V_M}"]))
    seq.append(valu(f"v_add_f32 v{V_MT}, {hex(f2u(TRAW))}, v{V_PM}", [f"v{V_PM}"], [f"v{V_MT}"]))
    seq.append(valu(f"v_mul_f32 v{V_MC}, s{S_C}, v{V_PM}", [f"v{V_PM}"], [f"v{V_MC}"]))
    seq.append(salu(f"s_add_u32 s{S_KT}, s{S_KT}, 1"))
    seq += echain(p, 0)
    return seq

def txt(seq):
    return [("" if x.kind == "label" else "  ") + x.text for x in seq]

def lsum_lines():
    return [f"  v_add_f32 v{V_L}, v{V_L}, v{V_L+1}", f"  v_add_f32 v{V_L+2}, v{V_L+2}, v{V_L+3}",
            f"  v_add_f32 v{V_L}, v{V_L}, v{V_L+2}"]
def crosshalf_add(reg):
    return [f"  v_mov_b32 v{V_TMP}, v{reg}", "  s_nop 1", f"  v_permlane32_swap_b32 v{V_TMP}, v{reg}",
            f"  v_add_f32 v{reg}, v{reg}, v{V_TMP}"]

def store_out(merge):
    t = [f"  s_lshl_b32 s{S_T0}, s{S_QT}, 16", f"  s_add_u32 s{S_T0}, s{S_T0}, s{S_HB}",
         f"  s_lshl_b32 s{S_T1}, s{S_W}, 14", f"  s_add_u32 s{S_T0}, s{S_T0}, s{S_T1}",
         f"  v_and_b32 v41, 31, v{V_LANE}", f"  v_lshrrev_b32 v42, 5, v{V_LANE}",
         f"  v_lshlrev_b32 v40, 9, v41", f"  v_lshl_add_u32 v40, v42, 3, v40", f"  v_add_u32 v40, s{S_T1}, v40",
         f"  v_lshlrev_b32 v41, 4, v41"]
    t += [f"  v_and_b32 v43, 31, v{V_LANE}", f"  v_xor_b32 v43, v43, v42", f"  v_lshlrev_b32 v43, 4, v43",
          f"  v_lshl_add_u32 v43, v42, 9, v43", f"  v_add_u32 v43, s{S_T1}, v43"]
    stA = []; stB = []
    for db in range(8):
        for pr in range(2):
            n = db * 2 + pr
            tb = 64 + 32 * (n & 1)
            r0 = 16 * db + 8 * pr
            A = []; B = []
            for i in range(8): A.append(f"  v_accvgpr_read_b32 v{tb+i}, a{A_O+r0+i}")
            ob = []
            if merge:
                p, b = ob_reg(n)
                for i in range(4):
                    A.append(f"  v_lshlrev_b32 v{tb+16+2*i}, 16, v{b+i}")
                    A.append(f"  v_and_b32 v{tb+17+2*i}, 0xffff0000, v{b+i}")
                ob = [tb + 16, tb + 18, tb + 20, tb + 22]
            for gsel in range(2):
                ch = 4 * db + 2 * pr + gsel
                A.append(f"  v_xor_b32 v{tb+12+gsel}, {hex(ch << 4)}, v41")
            for gsel in range(2):
                A.append(f"  v_add_u32 v{tb+12+gsel}, v{tb+12+gsel}, v40")
            for i in range(0, 8, 2):
                B.append(f"  v_pk_mul_f32 v[{tb+i}:{tb+i+1}], v[{tb+i}:{tb+i+1}], v[{V_FA}:{V_FA+1}]")
            if merge:
                for i in range(0, 8, 2):
                    b = ob[i // 2]
                    B.append(f"  v_pk_fma_f32 v[{tb+i}:{tb+i+1}], v[{b}:{b+1}], v[{V_FB}:{V_FB+1}], v[{tb+i}:{tb+i+1}]")
            for i in range(4):
                B.append(f"  v_cvt_pk_bf16_f32 v{tb+8+i}, v{tb+2*i}, v{tb+2*i+1}")
            for gsel in range(2):
                B.append(f"  ds_write_b64 v{tb+12+gsel}, v[{tb+8+2*gsel}:{tb+9+2*gsel}]")
            stA.append(A); stB.append(B)
    t += stA[0]
    for n in range(16):
        X = list(stB[n]); Y = list(stA[n + 1]) if n < 15 else []
        while X or Y:
            if X: t.append(X.pop(0))
            if Y: t.append(Y.pop(0))
    t.append("  s_waitcnt lgkmcnt(0)")
    for k in range(16):
        t.append(f"  v_xor_b32 v{128+k}, {hex((2 * k) << 4)}, v43")
        t.append(f"  ds_read_b128 v[{64+4*k}:{64+4*k+3}], v{128+k} offset:{k*1024}")
    for k in range(16):
        if k % 4 == 0 and k: t.append(f"  s_add_u32 s{S_T0}, s{S_T0}, 0x1000")
        t.append(f"  s_waitcnt lgkmcnt({15-k})")
        t.append(f"  buffer_store_dwordx4 v[{64+4*k}:{64+4*k+3}], v{V_WS}, s[{S_O}:{S_O+3}], s{S_T0} offen offset:{(k&3)*1024}{NTO}")
    return t

def main():
    L = []
    L += ["; Kernarg layout (48 bytes): q, k, v, out, debug, ws pointers (bf16 tensors 1x16x2048x256)",
          "; causal flash attention fwd: 256 WGs x 4 waves, 128 q rows per WG, split-K pairs for causal balance",
          "; @launch grid=(256,1,1) block=(256,1,1) lds=163840",
          '.amdgcn_target "amdgcn-amd-amdhsa--gfx950"', ".text", f".globl {NAME}", ".p2align 8",
          f".type {NAME},@function", f"{NAME}:"]
    a = L.append
    a("  s_cmp_ge_u32 s2, 256"); a("  s_cbranch_scc1 L_end")
    a("  s_load_dwordx4 s[80:83], s[0:1], 0"); a("  s_load_dwordx4 s[84:87], s[0:1], 16"); a("  s_load_dwordx4 s[88:91], s[0:1], 32")
    if STAMPS:
        a("  s_mov_b32 s94, 0"); a("  v_mov_b32 v60, 0"); L.extend(txt(stamp()))
        a("  s_memrealtime s[92:93]"); a("  s_waitcnt lgkmcnt(0)"); a("  v_writelane_b32 v60, s92, 62")
    a(f"  v_and_b32 v{V_LANE}, 63, v0"); a(f"  v_lshrrev_b32 v{V_TMP}, 6, v0"); a("  s_nop 0")
    a(f"  v_readfirstlane_b32 s{S_W}, v{V_TMP}")
    a(f"  s_and_b32 s{S_T0}, s2, 7"); a(f"  s_lshr_b32 s{S_T1}, s2, 3"); a(f"  s_and_b32 s{S_T2}, s{S_T1}, 1")
    a(f"  s_lshl_b32 s{S_T0}, s{S_T0}, 1"); a(f"  s_or_b32 s{S_T0}, s{S_T0}, s{S_T2}")
    a(f"  s_lshr_b32 s{S_T1}, s{S_T1}, 1")
    a(f"  s_lshl_b32 s{S_HB}, s{S_T0}, 20")
    a(f"  s_mov_b32 s{S_C}, {hex(f2u(CSCALE))}")
    a(f"  s_mov_b32 s{S_OOB}, 0x7ff00000")
    a(f"  s_mov_b32 s{S_KF}, 0"); a(f"  s_mov_b32 s{S_VF}, 0")
    a(f"  s_mov_b32 s{S_SEG2}, s{S_HB}")
    a(f"  s_lshl_b32 s{S_M0B}, s{S_W}, 13")
    a(f"  s_mov_b32 s{S_R}, s{S_T1}"); a(f"  s_mov_b32 s{S_TP}, {1 if opt('kvtouch', 1) else 2}")
    a(f"  s_add_u32 s{S_TAO}, s{S_T1}, 16"); a(f"  s_lshl_b32 s{S_TAO}, s{S_TAO}, 15"); a(f"  s_add_u32 s{S_TAO}, s{S_TAO}, s{S_HB}"); a(f"  s_mov_b32 s{S_TBO}, s{S_TAO}")
    if not opt('kvtouch', 1): a(f"  s_mov_b32 s{S_TAO}, s{S_OOB}"); a(f"  s_mov_b32 s{S_TBO}, s{S_OOB}")
    dl = [int(c) for c in opt("delta", "22100000")]
    dtab = sum(d << (2 * t) for t, d in enumerate(dl))
    a(f"  s_sub_u32 s{S_T2}, 15, s{S_T1}"); a(f"  s_min_u32 s{S_TSMALL}, s{S_T1}, s{S_T2}")
    a(f"  s_lshl_b32 s{S_T2}, s{S_TSMALL}, 1"); a(f"  s_lshr_b32 s{S_T3}, {hex(dtab)}, s{S_T2}"); a(f"  s_and_b32 s{S_T3}, s{S_T3}, 3")
    a(f"  s_sub_u32 s{S_N1}, 15, s{S_T2}"); a(f"  s_sub_u32 s{S_N1}, s{S_N1}, s{S_T3}")
    a(f"  s_cmp_lt_u32 s{S_T1}, 8"); a("  s_cbranch_scc0 L_typeA")
    a(f"  s_sub_u32 s{S_QT}, 15, s{S_T1}")
    a(f"  s_sub_u32 s{S_NT}, 17, s{S_T3}")
    a(f"  s_mov_b32 s{S_N}, s{S_N1}"); a(f"  s_mov_b32 s{S_KT}, 0"); a(f"  s_mov_b32 s{S_MSK}, 1000"); a(f"  s_mov_b32 s{S_MODE}, 0")
    a(f"  s_lshl_b32 s{S_Q2OFF}, s{S_T1}, 16"); a(f"  s_add_u32 s{S_Q2OFF}, s{S_Q2OFF}, s{S_HB}")
    a(f"  s_mov_b32 s{S_HOOK}, {0 if LOOK else 2}"); a(f"  s_mov_b32 s{S_KTJ}, 100000")
    a("  s_branch L_common")
    a("L_typeA:")
    a(f"  s_mov_b32 s{S_QT}, s{S_T1}")
    a(f"  s_add_u32 s{S_NT}, 17, s{S_T3}")
    a(f"  s_mov_b32 s{S_N}, s{S_NT}"); a(f"  s_lshl_b32 s{S_MSK}, s{S_T1}, 1"); a(f"  s_mov_b32 s{S_MODE}, 2")
    if opt("rot", 1):
        a(f"  s_lshl_b32 s{S_SEG2}, s{S_N1}, 15"); a(f"  s_add_u32 s{S_SEG2}, s{S_SEG2}, s{S_HB}")
        a(f"  s_mov_b32 s{S_KT}, 15"); a(f"  s_add_u32 s{S_KTJ}, s{S_MSK}, 2"); a(f"  s_sub_u32 s{S_N1}, s{S_KTJ}, 15")
    else:
        a(f"  s_mov_b32 s{S_KT}, s{S_N1}"); a(f"  s_mov_b32 s{S_N1}, s{S_NT}"); a(f"  s_mov_b32 s{S_KTJ}, 100000")
    a(f"  s_mov_b32 s{S_Q2OFF}, s{S_OOB}")
    a(f"  s_mov_b32 s{S_HOOK}, {4 if LOOK else 6}")
    a("L_common:")
    a(f"  s_lshl_b32 s{S_PAIR}, s{S_T0}, 3"); a(f"  s_add_u32 s{S_PAIR}, s{S_PAIR}, s{S_TSMALL}")
    a(f"  s_mul_i32 s{S_WSOFF}, s{S_PAIR}, 0x21000")
    a(f"  s_lshl_b32 s{S_KOFF}, s{S_KT}, 15"); a(f"  s_add_u32 s{S_KOFF}, s{S_KOFF}, s{S_HB}"); a(f"  s_mov_b32 s{S_VOFF}, s{S_KOFF}")
    a(f"  s_lshl_b32 s{S_QOFF}, s{S_QT}, 16"); a(f"  s_add_u32 s{S_QOFF}, s{S_QOFF}, s{S_HB}")
    l = V_LANE; t0 = V_T8; t1 = V_T8 + 1; t2 = V_T8 + 2; t3 = V_T8 + 3; t4 = V_T8 + 4
    a(f"  v_and_b32 v{t0}, 31, v{l}")
    a(f"  v_lshrrev_b32 v{t1}, 5, v{l}")
    a(f"  v_and_b32 v{t2}, 15, v{l}")
    a(f"  v_xor_b32 v{t4}, v{t0}, v{t1}")
    a(f"  v_lshlrev_b32 v{t4}, 4, v{t4}"); a(f"  v_lshl_add_u32 v{t4}, v{t1}, 9, v{t4}"); a(f"  v_add_u32 v{t4}, s{S_M0B}, v{t4}")
    for q in range(8):
        a(f"  v_xor_b32 v{V_DK+q}, {hex((2*q) << 4 | (q>>2)*4096)}, v{t4}")
    a(f"  v_lshrrev_b32 v{t3}, 4, v{l}"); a(f"  v_xor_b32 v{V_QDB}, v{t2}, v{t3}"); a(f"  v_lshlrev_b32 v{V_QDB}, 4, v{V_QDB}")
    a(f"  v_lshl_add_u32 v{V_QDB}, v{t3}, 9, v{V_QDB}"); a(f"  s_lshl_b32 s{S_T1}, s{S_W}, 14"); a(f"  v_add_u32 v{V_QDB}, s{S_T1}, v{V_QDB}")
    a(f"  v_xor_b32 v{V_QRB}, v{t1}, v{t2}"); a(f"  v_lshlrev_b32 v{V_QRB}, 4, v{V_QRB}"); a(f"  v_lshl_add_u32 v{V_QRB}, v{t0}, 8, v{V_QRB}")
    a(f"  s_add_u32 s{S_T1}, s{S_M0B}, 98304"); a(f"  v_add_u32 v{V_QRB}, s{S_T1}, v{V_QRB}")
    L.extend(txt(stamp()))
    a("  s_waitcnt lgkmcnt(0)")
    L.extend(txt(stamp()))
    for (srd, lo, n) in ((S_K, 82, 0x1000000), (S_Q, 80, 0x1000000)):
        a(f"  s_mov_b32 s{srd}, s{lo}"); a(f"  s_and_b32 s{srd+1}, s{lo+1}, 0xffff"); a(f"  s_mov_b32 s{srd+2}, {hex(n)}"); a(f"  s_mov_b32 s{srd+3}, 0x00020000")
    for grp in dma_k(0): L += txt(grp)
    KEEP = [f"  v_mov_b32 v{128+i}, v{V_T8+i}" for i in range(3)]
    L += KEEP
    for grp in q_dma(0, QS, S_QOFF) + q_dma(1, 98304, S_QOFF): L += txt(grp)
    L += [f"  v_mov_b32 v{V_T8+i}, v{128+i}" for i in range(3)]
    L.extend(txt(stamp()))
    for (srd, lo, n) in ((S_V, 84, 0x1000000), (S_O, 86, 0x1000000), (S_DBG, 88, 256), (S_WS, 90, 0x10000000)):
        a(f"  s_mov_b32 s{srd}, s{lo}"); a(f"  s_and_b32 s{srd+1}, s{lo+1}, 0xffff"); a(f"  s_mov_b32 s{srd+2}, {hex(n)}"); a(f"  s_mov_b32 s{srd+3}, 0x00020000")
    L += set_touch(S_K, S_V)
    a(f"  v_xor_b32 v{t3}, v{t1}, v{t2}"); a(f"  v_lshlrev_b32 v{t3}, 4, v{t3}"); a(f"  v_lshl_add_u32 v{t3}, v{t0}, 9, v{t3}")
    for c7 in range(8):
        a(f"  v_xor_b32 v{V_KA+c7}, {hex((2*c7) << 4)}, v{t3}")
    a(f"  v_lshlrev_b32 v{t3}, 2, v{t1}"); a(f"  v_xor_b32 v{t3}, v{t3}, v{t0}")
    a(f"  v_lshlrev_b32 v{t3}, 4, v{t3}"); a(f"  v_lshl_add_u32 v{t3}, v{t1}, 9, v{t3}"); a(f"  v_add_u32 v{V_DV}, s{S_M0B}, v{t3}")
    a(f"  v_xor_b32 v{V_DV+1}, 0x80, v{V_DV}")
    a(f"  v_lshrrev_b32 v{t3}, 2, v{t2}")
    a(f"  v_lshl_add_u32 v{t4}, v{t1}, 2, v{t3}")
    a(f"  v_lshlrev_b32 v{t4}, 9, v{t4}")
    a(f"  v_bfe_u32 v{t0}, v{l}, 4, 1"); a(f"  v_lshl_add_u32 v{t4}, v{t0}, 5, v{t4}")
    a(f"  v_and_b32 v{t0}, 3, v{l}"); a(f"  v_lshl_add_u32 v{t4}, v{t0}, 3, v{t4}")
    a(f"  v_add_u32 v{t4}, 0x10000, v{t4}")
    for dbl in range(4):
        a(f"  v_xor_b32 v{t0}, {dbl}, v{t3}"); a(f"  v_lshl_add_u32 v{V_VA+dbl}, v{t0}, 6, v{t4}")
    a(f"  v_lshlrev_b32 v{V_WS}, 4, v{l}")
    a(f"  v_lshlrev_b32 v{V_TOUCH}, 7, v0")
    a(f"  v_mov_b32 v{V_NINF}, 0xff800000")
    a(f"  v_mov_b32 v{V_FLAG}, 0")
    if opt("nods", 0):
        for r in range(128, 200): a(f"  v_mov_b32 v{r}, 0")
    pro_i = prologue(0, True); check_hazards(pro_i, "pro_i")
    L += txt(pro_i)
    a("L_after_pro0:")
    a(f"  s_cmp_eq_u32 s{S_REM}, 0"); a("  s_cbranch_scc1 L_tail0")
    b0 = body(0); b1 = body(1)
    check_hazards(pro_i + b0 + b1 + b0, "loop")
    a("L_body0:"); L += txt(b0)
    a("L_after_pro1:")
    a(f"  s_cmp_eq_u32 s{S_REM}, 0"); a("  s_cbranch_scc1 L_tail1")
    a("L_body1:"); L += txt(b1)
    a(f"  s_cmp_lg_u32 s{S_REM}, 0"); a("  s_cbranch_scc1 L_body0")
    t0s = tail(0); t1s = tail(1)
    check_hazards(b1 + t0s, "tail0"); check_hazards(b0 + t1s, "tail1")
    a("L_tail0:"); a(f"  s_cmp_eq_u32 s{S_MODE}, 0"); a("  s_cbranch_scc1 L_tailq0"); L += txt(t0s); a("  s_branch L_epi")
    tq0 = tail(0, True); tq1 = tail(1, True)
    check_hazards(b1 + tq0, "tailq0"); check_hazards(b0 + tq1, "tailq1")
    a("L_tailq0:"); L += txt(tq0); a("  s_branch L_epi")
    a("L_tailq1:"); L += txt(tq1); a("  s_branch L_epi")
    a("L_tail1:"); a(f"  s_cmp_eq_u32 s{S_MODE}, 0"); a("  s_cbranch_scc1 L_tailq1"); L += txt(t1s)
    a("L_epi:")
    L.extend(txt(stamp()))
    a("  s_nop 15"); a("  s_nop 15")
    L += lsum_lines()
    a(f"  s_cmp_eq_u32 s{S_MODE}, 1"); a("  s_cbranch_scc1 L_final")
    a(f"  s_cmp_eq_u32 s{S_MODE}, 2"); a("  s_cbranch_scc1 L_merge")
    L += ml_addr_lines()
    a(f"  v_mov_b32 v{V_T8}, v{V_M}"); a(f"  v_mov_b32 v{V_T8+1}, v{V_L}")
    a(f"  buffer_store_dwordx2 v[{V_T8}:{V_T8+1}], v{V_TMP2}, s[{S_WS}:{S_WS+3}], s{S_T1} offen sc1")
    for g in range(NCH):
        p, r = ob_reg(g)
        tb = 64 + 8 * (g & 3)
        for i in range(8): a(f"  v_accvgpr_read_b32 v{tb+i}, a{A_O+8*g+i}")
        if g:
            pp, pr_ = ob_reg(g - 1); ptb = 64 + 8 * ((g - 1) & 3)
            for i in range(4): a(f"  v_cvt_pk_bf16_f32 v{pr_+i}, v{ptb+2*i}, v{ptb+2*i+1}")
    pp, pr_ = ob_reg(NCH - 1); ptb = 64 + 8 * ((NCH - 1) & 3)
    for i in range(4): a(f"  v_cvt_pk_bf16_f32 v{pr_+i}, v{ptb+2*i}, v{ptb+2*i+1}")
    a(f"  s_cmp_gt_u32 s{S_TSMALL}, {opt('tdirect', 2)}"); a("  s_cbranch_scc1 L_copy")
    L += ws_addr_lines()
    for g in range(NCH):
        p, r = ob_reg(g)
        if g and g % 4 == 0: a(f"  s_add_u32 s{S_T0}, s{S_T0}, 0x1000")
        a(f"  buffer_store_dwordx4 v[{r}:{r+3}], v{V_WS}, s[{S_WS}:{S_WS+3}], s{S_T0} offen offset:{(g&3)*1024} sc1")
    a(f"  s_bitset1_b32 s{S_HOOK}, 0")
    a("  s_branch L_sw2")
    a("L_copy:")
    a(f"  s_bitset1_b32 s{S_HOOK}, 3"); a(f"  s_mov_b32 s{S_PCH}, 0")
    a("L_sw2:")
    a(f"  s_mov_b32 s{S_QT}, s{S_TSMALL}"); a(f"  s_lshl_b32 s{S_MSK}, s{S_TSMALL}, 1"); a(f"  s_add_u32 s{S_N}, s{S_MSK}, 2")
    a(f"  s_mov_b32 s{S_KT}, 0"); a(f"  s_mov_b32 s{S_MODE}, 1")
    a(f"  s_and_b32 s{S_T0}, s{S_N1}, 1"); a(f"  s_cmp_eq_u32 s{S_T0}, 1"); a("  s_cbranch_scc1 L_pro1")
    p0 = prologue(0, False); check_hazards(p0 + b0, "pro0")
    L += txt(p0); a("  s_branch L_after_pro0")
    a("L_pro1:")
    p1 = prologue(1, False); check_hazards(p1 + b1, "pro1")
    L += txt(p1); a("  s_branch L_after_pro1")
    a("L_final:")
    a(f"  s_and_b32 s{S_HOOK}, s{S_HOOK}, 9"); a("  s_cbranch_scc0 L_final2")
    a("L_flushB:")
    a(f"  s_bitcmp1_b32 s{S_HOOK}, 3"); a("  s_cbranch_scc0 L_flushB2")
    a(f"  s_call_b64 s[{S_LINK}:{S_LINK+1}], L_hook"); a(f"  s_bitset0_b32 s{S_HOOK}, 0"); a("  s_branch L_flushB")
    a("L_flushB2:")
    a("  s_waitcnt vmcnt(0)"); a("  s_barrier"); a(f"  s_mov_b32 s{S_HOOK}, 1"); a(f"  s_call_b64 s[{S_LINK}:{S_LINK+1}], L_hook")
    a("L_final2:")
    L += crosshalf_add(V_L)
    a(f"  v_rcp_f32 v{V_FA}, v{V_L}"); a("  s_nop 0"); a(f"  v_mov_b32 v{V_FA+1}, v{V_FA}")
    if opt("twice", 0):
        a("  s_mov_b32 s95, 2"); a("L_twice:"); L.extend(txt(stamp()))
    L += store_out(False)
    if opt("twice", 0):
        a("  s_sub_u32 s95, s95, 1"); a("  s_cmp_lg_u32 s95, 0"); a("  s_cbranch_scc1 L_twice")
    L += stamp_store()
    a("  s_endpgm")
    a("L_merge:")
    a(f"  s_mov_b32 s{S_T2}, 0x400000")
    a("L_flushA:")
    a(f"  s_and_b32 s{S_HOOK}, s{S_HOOK}, 0x14"); a("  s_cbranch_scc0 L_have")
    a("  s_waitcnt vmcnt(0)")
    a(f"  s_call_b64 s[{S_LINK}:{S_LINK+1}], L_hook")
    a(f"  s_sub_u32 s{S_T2}, s{S_T2}, 1"); a(f"  s_cmp_lg_u32 s{S_T2}, 0"); a("  s_cbranch_scc1 L_flushA")
    a("L_have:")
    L.extend(txt(stamp()))
    a("  s_waitcnt vmcnt(0)")
    a(f"  v_max_f32 v{V_TMP}, v{V_M}, v{V_ML}")
    a(f"  v_sub_f32 v{V_M}, v{V_M}, v{V_TMP}"); a(f"  v_sub_f32 v{V_ML}, v{V_ML}, v{V_TMP}")
    a(f"  v_mul_f32 v{V_M}, s{S_C}, v{V_M}"); a(f"  v_mul_f32 v{V_ML}, s{S_C}, v{V_ML}")
    a(f"  v_exp_f32 v{V_M}, v{V_M}"); a(f"  v_exp_f32 v{V_ML}, v{V_ML}"); a("  s_nop 0")
    a(f"  v_mul_f32 v{V_L}, v{V_L}, v{V_M}"); a(f"  v_fma_f32 v{V_L}, v{V_ML+1}, v{V_ML}, v{V_L}")
    L += crosshalf_add(V_L)
    a(f"  v_rcp_f32 v{V_L}, v{V_L}"); a("  s_nop 0")
    a(f"  v_mul_f32 v{V_FA}, v{V_M}, v{V_L}"); a(f"  v_mul_f32 v{V_FB}, v{V_ML}, v{V_L}")
    a(f"  v_mov_b32 v{V_FA+1}, v{V_FA}"); a(f"  v_mov_b32 v{V_FB+1}, v{V_FB}")
    L += store_out(True)
    L += stamp_store()
    a("L_end:")
    a("  s_endpgm")
    L += hook_sub()
    L += OOL
    L += ['.section .rodata,"a"', ".p2align 6", f".amdhsa_kernel {NAME}",
          "  .amdhsa_next_free_vgpr 512", "  .amdhsa_next_free_sgpr 100", "  .amdhsa_accum_offset 256",
          "  .amdhsa_group_segment_fixed_size 0", "  .amdhsa_kernarg_size 48", "  .amdhsa_user_sgpr_count 2",
          "  .amdhsa_user_sgpr_kernarg_segment_ptr 1", "  .amdhsa_system_sgpr_workgroup_id_x 1", ".end_amdhsa_kernel"]
    open(OUT, "w").write("\n".join(L) + "\n")

main()
```

```python
import sys, struct, math

OUT = sys.argv[1] if len(sys.argv) > 1 else "standalone__softmax_full_causal__prompt.s"
OPT = dict(a.split("=") for a in sys.argv[2:])
def opt(name, default):
    return type(default)(OPT.get(name, default))

NAME = "standalone__softmax_full_causal__prompt_kernel"

def f2u(x):
    return struct.unpack("<I", struct.pack("<f", x))[0]

CSCALE = math.log2(math.e) / 16.0
TRAW = 8.0 / CSCALE

V_LANE = 1
V_KA = 2
V_VA = 10
V_DK = 14
V_DV = 22
V_QO = 24
V_WS = 25
V_QROW = 26
V_M = 27; V_MT = 28; V_MC = 29
V_L = 30
V_ALPHA = 34; V_PM = 35; V_TMP = 36; V_NINF = 37; V_THR = 38; V_TMP2 = 39
V_T8 = 40
V_FA = 44; V_FB = 46
V_TOUCH = 48; V_DUMMY = 49
V_S = [64, 96]
V_KF = 128; NKF = 8
V_VF = 160; NVF = 10
A_O = 0; A_Q = 128; A_Q2 = 192

S_Q, S_K, S_V, S_O, S_WS, S_DBG = 4, 8, 12, 16, 20, 24
S_W = 28; S_HB = 29; S_C = 30; S_REM = 31; S_KT = 32; S_MSK = 33
S_KOFF = 34; S_VOFF = 35; S_VOFF2 = 36; S_KF = 37; S_VF = 38; S_N1 = 39; S_SEG2 = 40; S_NT = 41
S_RESC = 42; S_PUB = 43; S_M0B = 44; S_OOB = 45; S_MODE = 48; S_QT = 49; S_N = 50; S_PAIR = 51
S_T0 = 52; S_T1 = 53; S_T2 = 54; S_T3 = 55; S_WSOFF = 46; S_QOFF = 47
S_MK = 56
S_TSMALL = 64

DKD = opt("dk", 4)
DVD = opt("dv", 6)
BARG = 63 - DKD
NODMA = opt("nodma", 0)

class I:
    __slots__ = ("text", "kind", "rd", "wr", "cost", "dsid", "need", "srcc")
    def __init__(self, text, kind, rd=(), wr=(), cost=1.0, dsid=None, need=(), srcc=()):
        self.text = text; self.kind = kind; self.rd = set(rd); self.wr = set(wr)
        self.cost = cost; self.dsid = dsid; self.need = tuple(need); self.srcc = set(srcc)

def R(p, b, n=1):
    return [f"{p}{b+i}" for i in range(n)]
def rs(p, b, n):
    return f"{p}[{b}:{b+n-1}]" if n > 1 else f"{p}{b}"

_lab = [0]
def newlab(s):
    _lab[0] += 1
    return f"L_{s}_{_lab[0]}"

def valu(text, rd, wr, cost=1.0): return I(text, "valu", rd, wr, cost)
def trans(text, rd, wr): return I(text, "trans", rd, wr, 2.0)
def salu(text, cost=0.5): return I(text, "salu", (), (), cost)
def label(l): return I(l + ":", "label", cost=0.0)
def raw(text, kind="other", cost=1.0): return I(text, kind, cost=cost)

_ds = [0]
def ds_k(frag, c, kb, slot):
    _ds[0] += 1
    d = V_KF + 4 * frag
    off = slot * 32768 + kb * 16384 + (c >> 3) * 256
    return I(f"ds_read_b128 {rs('v', d, 4)}, v{V_KA + (c & 7)} offset:{off}", "ds", [f"v{V_KA + (c & 7)}"], R("v", d, 4), 1.0, dsid=_ds[0])
def ds_v(frag, kc, db, half, slot):
    _ds[0] += 1
    d = V_VF + 4 * frag + 2 * half
    off = slot * 32768 + kc * 8192 + half * 4096 + (db >> 2) * 256
    return I(f"ds_read_b64_tr_b16 {rs('v', d, 2)}, v{V_VA + (db & 3)} offset:{off}", "ds", [f"v{V_VA + (db & 3)}"], R("v", d, 2), 1.0, dsid=_ds[0])

def mfma_qk(p, kb, c, frag, need):
    s = V_S[p] + 16 * kb
    a = V_KF + 4 * frag
    q = A_Q + 4 * c
    cc = "0" if c == 0 else rs("v", s, 16)
    rd = R("v", a, 4) + R("a", q, 4)
    return I(f"v_mfma_f32_32x32x16_bf16 {rs('v', s, 16)}, {rs('v', a, 4)}, {rs('a', q, 4)}, {cc}", "mfma",
             rd, R("v", s, 16), 2.0, need=need, srcc=([] if c == 0 else R("v", s, 16)))
def mfma_pv(p, kc, db, frag, need):
    pb = V_S[p] + 16 * (kc >> 1) + 8 * (kc & 1)
    a = V_VF + 4 * frag
    o = A_O + 16 * db
    return I(f"v_mfma_f32_32x32x16_bf16 {rs('a', o, 16)}, {rs('v', a, 4)}, {rs('v', pb, 4)}, {rs('a', o, 16)}", "mfma",
             R("v", a, 4) + R("v", pb, 4), R("a", o, 16), 2.0, need=need, srcc=R("a", o, 16))

def echain(p, kb):
    s = V_S[p] + 16 * kb
    out = []
    def fma(i): return valu(f"v_fma_f32 v{s+i}, v{s+i}, s{S_C}, -v{V_MC}", [f"v{s+i}", f"v{V_MC}"], [f"v{s+i}"])
    def ex(i): return trans(f"v_exp_f32 v{s+i}, v{s+i}", [f"v{s+i}"], [f"v{s+i}"])
    def add(i):
        l = V_L + (i & 3)
        return valu(f"v_add_f32 v{l}, v{l}, v{s+i}", [f"v{l}", f"v{s+i}"], [f"v{l}"])
    def pk(i):
        d = s + 8 * (i >> 3) + ((i & 7) >> 1)
        return valu(f"v_cvt_pk_bf16_f32 v{d}, v{s+i}, v{s+i+1}", [f"v{s+i}", f"v{s+i+1}"], [f"v{d}"])
    for i in range(19):
        if i < 16: out.append(fma(i))
        if 1 <= i <= 16: out.append(ex(i - 1))
        if 3 <= i <= 18:
            out.append(add(i - 3))
            if (i - 3) & 1: out.append(pk(i - 4))
    return out

def max16(p, kb, first):
    s = V_S[p] + 16 * kb
    out = []
    if first:
        out.append(valu(f"v_max3_f32 v{V_PM}, v{s}, v{s+1}, v{s+2}", R("v", s, 3), [f"v{V_PM}"]))
        i = 3
    else:
        i = 0
    while i + 1 < 16:
        out.append(valu(f"v_max3_f32 v{V_PM}, v{V_PM}, v{s+i}, v{s+i+1}", [f"v{V_PM}", f"v{s+i}", f"v{s+i+1}"], [f"v{V_PM}"]))
        i += 2
    if i < 16:
        out.append(valu(f"v_max_f32 v{V_PM}, v{V_PM}, v{s+i}", [f"v{V_PM}", f"v{s+i}"], [f"v{V_PM}"]))
    return out

def crosshalf_max():
    return [valu(f"v_mov_b32 v{V_TMP}, v{V_PM}", [f"v{V_PM}"], [f"v{V_TMP}"]),
            raw("s_nop 1", "nop", 1.0),
            I(f"v_permlane32_swap_b32 v{V_TMP}, v{V_PM}", "perm", [f"v{V_TMP}", f"v{V_PM}"], [f"v{V_TMP}", f"v{V_PM}"]),
            valu(f"v_max_f32 v{V_PM}, v{V_PM}, v{V_TMP}", [f"v{V_PM}", f"v{V_TMP}"], [f"v{V_PM}"])]

OOL = []

def mask_check(p, kb):
    lm = newlab(f"mask{kb}"); lr = newlab("ret")
    s = V_S[p] + 16 * kb
    t = [f"{lm}:", f"  s_lshl_b32 s{S_T0}, s{S_KT}, 6", f"  v_subrev_u32 v{V_THR}, s{S_T0}, v{V_QROW}"]
    for g in range(4):
        for r4 in range(4):
            r = 4 * g + r4
            ko = 32 * kb + 8 * g + r4
            t.append(f"  v_cmp_gt_i32 s[{S_MK+2*r4}:{S_MK+2*r4+1}], {ko}, v{V_THR}")
        for r4 in range(4):
            r = 4 * g + r4
            t.append(f"  v_cndmask_b32 v{s+r}, v{s+r}, v{V_NINF}, s[{S_MK+2*r4}:{S_MK+2*r4+1}]")
    t.append(f"  s_branch {lr}")
    OOL.extend(t)
    return [salu(f"s_cmp_ge_u32 s{S_KT}, s{S_MSK}"),
            I(f"s_cbranch_scc1 {lm}", "salu", R("v", s, 16), R("v", s, 16), 0.5),
            label(lr)]

def rare_check():
    lm = newlab("rare"); lr = newlab("ret")
    t = [f"{lm}:",
         f"  v_mov_b32 v{V_TMP}, v{V_PM}", "  s_nop 1", f"  v_permlane32_swap_b32 v{V_TMP}, v{V_PM}",
         f"  v_max3_f32 v{V_TMP}, v{V_M}, v{V_PM}, v{V_TMP}",
         f"  v_sub_f32 v{V_TMP2}, v{V_M}, v{V_TMP}",
         f"  v_mul_f32 v{V_TMP2}, s{S_C}, v{V_TMP2}",
         f"  v_exp_f32 v{V_ALPHA}, v{V_TMP2}",
         f"  v_mov_b32 v{V_M}, v{V_TMP}",
         f"  v_add_f32 v{V_MT}, {hex(f2u(TRAW))}, v{V_TMP}",
         f"  v_mul_f32 v{V_MC}, s{S_C}, v{V_TMP}"]
    for i in range(4):
        t.append(f"  v_mul_f32 v{V_L+i}, v{V_L+i}, v{V_ALPHA}")
    t += [f"  s_mov_b32 s{S_RESC}, 1", f"  s_branch {lr}"]
    OOL.extend(t)
    return [valu(f"v_cmp_gt_f32 vcc, v{V_PM}, v{V_MT}", [f"v{V_PM}", f"v{V_MT}"], ["vcc"]),
            salu(f"s_cbranch_vccnz {lm}"), label(lr)]

def resc_check():
    lm = newlab("resc"); lr = newlab("ret")
    t = [f"{lm}:", "  s_nop 15", "  s_nop 15"]
    for r0 in range(0, 128, 8):
        for i in range(8): t.append(f"  v_accvgpr_read_b32 v{V_T8+i}, a{A_O+r0+i}")
        for i in range(8): t.append(f"  v_mul_f32 v{V_T8+i}, v{V_T8+i}, v{V_ALPHA}")
        for i in range(8): t.append(f"  v_accvgpr_write_b32 a{A_O+r0+i}, v{V_T8+i}")
    t += [f"  s_mov_b32 s{S_RESC}, 0", "  s_nop 1", f"  s_branch {lr}"]
    OOL.extend(t)
    return [salu(f"s_cmp_lg_u32 s{S_RESC}, 0"), salu(f"s_cbranch_scc1 {lm}"), label(lr)]

S_HOOK = S_PUB
S_Q2OFF = 65; S_KTJ = 66
V_FLAG = 61 if not opt("stamps", 0) else 63
V_ML = 58
def ob_reg(g):
    return ("v", 200 + 4 * g) if g < 14 else ("v", 50 + 4 * (g - 14))
NCH = 16
S_LINK = 96; S_PCH = 67; S_POLL = 98; S_STARTED = 99
NPS = opt("nps", 4)
def ws_addr_lines():
    return [f"  s_lshl_b32 s{S_T0}, s{S_W}, 14", f"  s_add_u32 s{S_T0}, s{S_T0}, s{S_WSOFF}"]
def ml_addr_lines():
    return [f"  s_lshl_b32 s{S_T1}, s{S_W}, 9", f"  s_add_u32 s{S_T1}, s{S_T1}, s{S_WSOFF}", f"  s_add_u32 s{S_T1}, s{S_T1}, 0x20000",
            f"  v_lshlrev_b32 v{V_TMP2}, 3, v{V_LANE}"]
def set_touch(srd_a, srd_b):
    return [f"  s_mov_b64 s[{S_TA}:{S_TA+1}], s[{srd_a}:{srd_a+1}]", f"  s_mov_b64 s[{S_TA+2}:{S_TA+3}], s[{srd_a+2}:{srd_a+3}]",
            f"  s_mov_b64 s[{S_TB}:{S_TB+1}], s[{srd_b}:{srd_b+1}]", f"  s_mov_b64 s[{S_TB+2}:{S_TB+3}], s[{srd_b+2}:{srd_b+3}]"]
def hook_sub():
    t = ["L_hook:",
         f"  s_bitcmp1_b32 s{S_HOOK}, 0", "  s_cbranch_scc0 L_h1",
         f"  s_bitset0_b32 s{S_HOOK}, 0", f"  s_cmp_lg_u32 s{S_W}, 0", "  s_cbranch_scc1 L_h1",
         f"  v_mov_b32 v{V_TMP2}, 1", f"  v_mov_b32 v{V_THR}, 0",
         f"  s_mov_b64 s[{S_MK}:{S_MK+1}], exec", "  s_mov_b64 exec, 1",
         f"  buffer_store_byte v{V_TMP2}, v{V_THR}, s[{S_DBG}:{S_DBG+3}], s{S_PAIR} offen sc1",
         f"  s_mov_b64 exec, s[{S_MK}:{S_MK+1}]",
         "L_h1:",
         f"  s_bitcmp1_b32 s{S_HOOK}, 1", "  s_cbranch_scc0 L_h2",
         f"  s_cmp_eq_u32 s{S_TP}, 1", "  s_cbranch_scc0 L_p1",
         f"  s_lshl_b32 s{S_TAO}, s{S_R}, 15", f"  s_add_u32 s{S_TAO}, s{S_TAO}, s{S_HB}", f"  s_mov_b32 s{S_TBO}, s{S_TAO}",
         f"  s_mov_b32 s{S_TP}, 2", "  s_branch L_h2",
         "L_p1:", f"  s_cmp_eq_u32 s{S_TP}, 2", "  s_cbranch_scc0 L_p3"]
    t += set_touch(S_Q, S_Q)
    t += [f"  s_mov_b32 s{S_TAO}, s{S_Q2OFF}", f"  s_add_u32 s{S_TBO}, s{S_Q2OFF}, 0x8000", f"  s_mov_b32 s{S_TP}, 3", "  s_branch L_h2",
          "L_p3:", f"  s_mov_b32 s{S_TAO}, s{S_OOB}", f"  s_mov_b32 s{S_TBO}, s{S_OOB}", f"  s_bitset0_b32 s{S_HOOK}, 1",
          "L_h2:",
          f"  s_bitcmp1_b32 s{S_HOOK}, 2", "  s_cbranch_scc0 L_h3",
          f"  v_cmp_ne_u32 vcc, 0, v{V_FLAG}", "  s_cbranch_vccnz L_got",
          f"  v_mov_b32 v{V_THR}, 0",
          f"  buffer_load_ubyte v{V_FLAG}, v{V_THR}, s[{S_DBG}:{S_DBG+3}], s{S_PAIR} offen sc1",
          f"  s_setpc_b64 s[{S_LINK}:{S_LINK+1}]",
          "L_got:", "  buffer_inv sc1", f"  s_mov_b32 s{S_STARTED}, 1", f"  s_bitset0_b32 s{S_HOOK}, 2", f"  s_bitset1_b32 s{S_HOOK}, 4", f"  s_mov_b32 s{S_PCH}, 0"]
    t += ml_addr_lines()
    t += [f"  buffer_load_dwordx2 v[{V_ML}:{V_ML+1}], v{V_TMP2}, s[{S_WS}:{S_WS+3}], s{S_T1} offen sc1",
          "L_h3:",
          f"  s_and_b32 s{S_T1}, s{S_HOOK}, 0x18", "  s_cbranch_scc0 L_hret"]
    t += ws_addr_lines()
    nb = NCH // NPS
    for kind in ("st", "ld"):
        if kind == "st": t += [f"  s_bitcmp1_b32 s{S_HOOK}, 3", "  s_cbranch_scc0 L_ld_0"]
        for b in range(nb):
            t.append(f"L_{kind}_{b}:")
            if b < nb - 1: t += [f"  s_cmp_lg_u32 s{S_PCH}, {b}", f"  s_cbranch_scc1 L_{kind}_{b+1}"]
            for g in range(b * NPS, (b + 1) * NPS):
                p, r = ob_reg(g)
                if g % 4 == 0: t.append(f"  s_add_u32 s{S_T1}, s{S_T0}, {hex((g // 4) * 0x1000)}")
                op = "buffer_store_dwordx4" if kind == "st" else "buffer_load_dwordx4"
                t.append(f"  {op} {rs(p, r, 4)}, v{V_WS}, s[{S_WS}:{S_WS+3}], s{S_T1} offen offset:{(g&3)*1024} sc1")
            if b < nb - 1: t.append(f"  s_add_u32 s{S_PCH}, s{S_PCH}, 1")
            elif kind == "st": t += [f"  s_bitset0_b32 s{S_HOOK}, 3", f"  s_bitset1_b32 s{S_HOOK}, 0"]
            else: t.append(f"  s_bitset0_b32 s{S_HOOK}, 4")
            t.append(f"  s_setpc_b64 s[{S_LINK}:{S_LINK+1}]")
    t += ["L_hret:", f"  s_setpc_b64 s[{S_LINK}:{S_LINK+1}]"]
    return t
def pub_check():
    lr = newlab("ret")
    return [salu(f"s_cmp_lg_u32 s{S_HOOK}, 0"), salu(f"s_cbranch_scc0 {lr}"), salu(f"s_call_b64 s[{S_LINK}:{S_LINK+1}], L_hook"), label(lr)]

def dma_k(slot):
    g = []
    for q in range(8):
        grp = []
        if q in (0, 4):
            grp.append(salu(f"s_add_u32 m0, s{S_M0B}, {slot*32768 + (q>>2)*4096}"))
            grp.append(raw("s_nop 0", "nop", 0.5))
        if not NODMA:
            grp.append(I(f"buffer_load_dwordx4 v{V_DK+q}, s[{S_K}:{S_K+3}], s{S_KOFF} offen offset:{(q&3)*1024} lds", "vmem", [f"v{V_DK+q}"], [], opt("dmacost", 3.0)))
        g.append(grp)
    g.append([salu(f"s_add_u32 s{S_KF}, s{S_KF}, 1"), salu(f"s_add_u32 s{S_KOFF}, s{S_KOFF}, 0x8000"),
              salu(f"s_cmp_eq_u32 s{S_KF}, s{S_N1}"), salu(f"s_cselect_b32 s{S_KOFF}, s{S_SEG2}, s{S_KOFF}"),
              salu(f"s_cmp_ge_u32 s{S_KF}, s{S_NT}"), salu(f"s_cselect_b32 s{S_KOFF}, s{S_OOB}, s{S_KOFF}")])
    return g
def dma_v(slot):
    g = []
    for q in range(8):
        grp = []
        if q == 0:
            grp.append(salu(f"s_add_u32 s{S_VOFF2}, s{S_VOFF}, 0x1000"))
        if q in (0, 4):
            grp.append(salu(f"s_add_u32 m0, s{S_M0B}, {65536 + slot*32768 + (q>>2)*4096}"))
            grp.append(raw("s_nop 0", "nop", 0.5))
        so = S_VOFF if q < 4 else S_VOFF2
        if not NODMA:
            grp.append(I(f"buffer_load_dwordx4 v{V_DV+(q&1)}, s[{S_V}:{S_V+3}], s{so} offen offset:{(q&3)*1024} lds", "vmem", [f"v{V_DV+(q&1)}"], [], opt("dmacost", 3.0)))
        g.append(grp)
    g.append([salu(f"s_add_u32 s{S_VF}, s{S_VF}, 1"), salu(f"s_add_u32 s{S_VOFF}, s{S_VOFF}, 0x8000"),
              salu(f"s_cmp_eq_u32 s{S_VF}, s{S_N1}"), salu(f"s_cselect_b32 s{S_VOFF}, s{S_SEG2}, s{S_VOFF}"),
              salu(f"s_cmp_ge_u32 s{S_VF}, s{S_NT}"), salu(f"s_cselect_b32 s{S_VOFF}, s{S_OOB}, s{S_VOFF}")])
    return g

def schedule(mfmas, fixed, stream, pre_issued, head=()):
    n = len(mfmas)
    gc = lambda g: sum(x.cost for x in g)
    gaps = [list(fixed.get(i, [])) for i in range(n)]
    total = sum(gc(g) for gl in gaps for g in gl) + sum(gc(it[0]) for it in stream)
    per = total / n
    cum = 0.0
    si = 0
    for i in range(n):
        cum += sum(gc(g) for g in gaps[i])
        ins = []
        while si < len(stream):
            grp, e, lt = stream[si]
            if e > i: break
            c = gc(grp)
            if cum + c / 2 > per * (i + 1) and not (lt is not None and lt <= i) and i != n - 1: break
            ins.append(grp); cum += c; si += 1
        fx = gaps[i]; merged = []
        while fx or ins:
            if fx: merged.extend(fx.pop(0))
            if ins: merged.extend(ins.pop(0))
        gaps[i] = merged
    assert si == len(stream), "stream left over"
    out = list(head)
    issued = list(pre_issued); done = 0
    WGRP = opt("wgrp", 1)
    for i in range(n):
        m = mfmas[i]
        if m.need:
            need = [d for d in m.need]
            if i % WGRP == 0:
                for k in range(1, WGRP):
                    if i + k < n: need += [d for d in mfmas[i + k].need if d in issued]
            pos = max(issued.index(d) for d in need)
            if pos >= done:
                N = len(issued) - 1 - pos
                out.append(raw(f"s_waitcnt lgkmcnt({min(N,15)})", "wait", 0.5))
                done = len(issued) - min(N, 15)
        out.append(m)
        for x in gaps[i]:
            out.append(x)
            if x.kind == "ds": issued.append(x.dsid)
            if x.kind == "wait0": done = len(issued)
    return out, issued[done:]

def check_hazards(seq, name):
    if opt("novalu", 0) or opt("nods", 0): return
    seq0 = [x for x in seq if x.kind != "label"]
    seq = []
    for x in seq0:
        seq.append(x)
        if x.kind == "nop":
            for _ in range(int(x.text.split()[1])): seq.append(x)
    lastmf = {}; lastvalu = {}; lasttrans = {}; lastsrcc = {}; lastw = {}
    for i, x in enumerate(seq):
        if x.kind == "mfma" and x.text.split()[1].startswith("a["):
            for r in x.rd:
                if 64 <= int(r[1:]) < 128 and r in lastw and not lastw[r].startswith("v_cvt_pk"):
                    print(f"DEP {name}: P reg {r} last written by {lastw[r]} for {x.text}")
        for r in x.wr: lastw[r] = x.text
        isv = x.kind in ("valu", "trans", "perm")
        touch = x.rd | x.wr
        if x.kind == "mfma":
            for r in x.rd:
                if r in lastmf and i - lastmf[r] - 1 < 12: print(f"HAZ {name}: mfma->mfma AB {r} {x.text}")
                if r in lastvalu and i - lastvalu[r] - 1 < 2: print(f"HAZ {name}: valu->mfma {r} {x.text}")
            for r in x.srcc:
                if r in lastvalu and i - lastvalu[r] - 1 < 2: print(f"HAZ {name}: valu->mfma C {r} {x.text}")
            for r in x.wr - x.srcc:
                if r in lastmf and i - lastmf[r] - 1 < 12: print(f"HAZ {name}: mfma WAW {r} {x.text}")
        else:
            for r in touch:
                if r in lastmf and i - lastmf[r] - 1 < 12: print(f"HAZ {name}: mfma->other {r} dist {i-lastmf[r]-1} {x.text}")
            if isv:
                for r in x.wr:
                    if r in lastsrcc and i - lastsrcc[r] - 1 < 7: print(f"HAZ {name}: srcC WAR {r} {x.text}")
            if x.kind == "valu" or x.kind == "perm":
                for r in x.rd:
                    if r in lasttrans and i - lasttrans[r] - 1 < 1: print(f"HAZ {name}: trans->valu {r} {x.text}")
            if x.kind == "perm":
                for r in x.rd:
                    if r in lastvalu and i - lastvalu[r] - 1 < 2: print(f"HAZ {name}: valu->perm {r} {x.text}")
        if x.kind == "mfma":
            for r in x.wr: lastmf[r] = i
            for r in x.srcc: lastsrcc[r] = i
        if isv:
            for r in x.wr:
                lastvalu[r] = i
                if x.kind == "trans": lasttrans[r] = i
                else: lasttrans.pop(r, None)

PRE = [-(k + 1) for k in range(DKD)]

def k_prereads(slot):
    out = []
    for k in range(DKD):
        x = ds_k(k % NKF, k, 0, slot); x.dsid = PRE[k]; out.append(x)
    return out

def spread(groups, g0, step):
    d = {}
    for k, grp in enumerate(groups):
        d.setdefault(g0 + int(round(k * step)), []).append(grp)
    return d
def addfix(fixed, d):
    for k, v in d.items(): fixed.setdefault(k, []).extend(v)

STAMPS = opt("stamps", 0)
def stamp():
    if not STAMPS: return []
    return [raw("s_memtime s[92:93]"), raw("s_waitcnt lgkmcnt(0)", "wait"), raw("s_mov_b32 m0, s94"), raw("s_nop 0"), raw("v_writelane_b32 v60, s92, m0"), raw("s_add_u32 s94, s94, 1")]
def stamp_store():
    if not STAMPS: return []
    return txt(stamp()) + ["  s_memrealtime s[92:93]", "  s_waitcnt lgkmcnt(0)", "  v_writelane_b32 v60, s92, 63", "  s_lshl_b32 s92, s2, 12", f"  s_lshl_b32 s93, s{S_W}, 8", "  s_add_u32 s92, s92, s93", "  s_add_u32 s92, s92, 0x4000000",
            f"  v_lshlrev_b32 v61, 2, v{V_LANE}", f"  buffer_store_dword v60, v61, s[{S_WS}:{S_WS+3}], s92 offen"]
TOUCH = opt("touch", 2)
S_TA = 68; S_TB = 72; S_TAO = 76; S_TBO = 77; S_R = 78; S_TP = 79
LOOK = opt("look", 0)
def touch_groups():
    if not TOUCH or NODMA: return []
    if LOOK:
        return [[salu(f"s_add_u32 s{S_TAO}, s{S_KOFF}, {hex((LOOK-1)*0x8000)}"),
                 I(f"buffer_load_dword v{V_DUMMY}, v{V_TOUCH}, s[{S_K}:{S_K+3}], s{S_TAO} offen", "vmem", [], [], 2.0)],
                [salu(f"s_add_u32 s{S_TBO}, s{S_VOFF}, {hex((LOOK-1)*0x8000)}"),
                 I(f"buffer_load_dword v{V_DUMMY}, v{V_TOUCH}, s[{S_V}:{S_V+3}], s{S_TBO} offen", "vmem", [], [], 2.0)]]
    return [[I(f"buffer_load_dword v{V_DUMMY}, v{V_TOUCH}, s[{S_TA}:{S_TA+3}], s{S_TAO} offen", "vmem", [], [], 2.0)],
            [I(f"buffer_load_dword v{V_DUMMY}, v{V_TOUCH}, s[{S_TB}:{S_TB+3}], s{S_TBO} offen", "vmem", [], [], 2.0)]]
V_QRB = 24; V_QDB = 62; QS = 131072
NTQ = " nt" if opt("ntq", 0) else ""
NTO = {0: "", 1: " nt", 2: " sc1", 3: " sc1 nt", 4: " sc0 sc1 nt", 5: " sc0 sc1"}[opt("nto", 0)]
def q_dma(r, lbase, soff):
    g = []
    for k in range(8):
        t = V_T8 + (k & 3)
        g.append([valu(f"v_xor_b32 v{t}, {hex((4 * (k & 3)) << 4)}, v{V_QDB}", [], [f"v{t}"]),
                  salu(f"s_add_u32 m0, s{S_M0B}, {lbase + k * 1024}"),
                  salu(f"s_add_u32 s{S_T3}, s{soff}, {k * 2048 + r * 256}"),
                  I(f"buffer_load_dwordx4 v{t}, s[{S_Q}:{S_Q+3}], s{S_T3} offen{NTQ} lds", "vmem", [], [], 3.0)])
    return g
def q_reads(r, lbase):
    g = []
    for c in range(8):
        _ds[0] += 1
        t = V_T8 + 4 + (c & 3)
        d = A_Q + 4 * (8 * r + c)
        g.append([valu(f"v_xor_b32 v{t}, {hex((2 * c) << 4)}, v{V_QRB}", [], [f"v{t}"]),
                  I(f"ds_read_b128 {rs('a', d, 4)}, v{t} offset:{lbase - 98304}", "ds", [], R("a", d, 4), 1.0, dsid=_ds[0])])
    return g
def barrier_items():
    return [[raw(f"s_waitcnt vmcnt({2 if (TOUCH and not NODMA) else 0}) lgkmcnt(0)", "wait0", 0.5)], [raw("s_barrier", "bar", 1.0)] + stamp() + pub_check()]

def body(p):
    q = 1 - p
    fixed = {}; mf = []
    kid = {}
    for i in range(32):
        if i < DKD: kid[i] = PRE[i]
        else:
            x = ds_k(i % NKF, i & 15, i >> 4, q); kid[i] = x.dsid
            fixed.setdefault(i - DKD, []).append([x])
    for i in range(32):
        mf.append(mfma_qk(q, i >> 4, i & 15, i % NKF, [kid[i]]))
    for i in range(32):
        kc, db = i >> 3, i & 7
        a = ds_v(i % NVF, kc, db, 0, p); b = ds_v(i % NVF, kc, db, 1, p)
        fixed.setdefault(min(32 + i - DVD, BARG - 1), []).extend([[a], [b]])
        mf.append(mfma_pv(p, kc, db, i % NVF, [a.dsid, b.dsid]))
    dg = dma_k(p) + dma_v(q) + touch_groups()
    addfix(fixed, spread(dg, opt("dma0", 0), opt("dmastep", 2.0)))
    addfix(fixed, {BARG: barrier_items()})
    pr = k_prereads(p)
    for k in range(DKD): fixed.setdefault(64 - DKD + k, []).append([pr[k]])
    stream = []
    for x in echain(p, 1): stream.append(([x], 0, 44))
    stream.append((mask_check(q, 0), 19, None))
    for x in max16(q, 0, True): stream.append(([x], 19, None))
    stream.append((mask_check(q, 1), 35, None))
    for x in max16(q, 1, False): stream.append(([x], 35, None))
    stream.append((rare_check(), 35, None))
    stream.append(([salu(f"s_add_u32 s{S_KT}, s{S_KT}, 1"), salu(f"s_cmp_eq_u32 s{S_KT}, s{S_KTJ}"), salu(f"s_cselect_b32 s{S_KT}, 0, s{S_KT}")], 35, None))
    for x in echain(q, 0): stream.append(([x], 35, None))
    stream.append(([salu(f"s_cmp_eq_u32 s{S_REM}, s{S_POLL}"), salu(f"s_cselect_b32 s{S_T2}, 4, 0"), salu(f"s_or_b32 s{S_HOOK}, s{S_HOOK}, s{S_T2}")], 35, None))
    stream.append(([salu(f"s_sub_u32 s{S_REM}, s{S_REM}, 1")], 35, None))
    if opt("novalu", 0):
        stream = [([x for x in it[0] if x.kind == "label" or (x.kind == "salu" and "s_cmp" not in x.text and "branch" not in x.text)], it[1], it[2]) for it in stream]
        stream = [it for it in stream if it[0]]
    if opt("nods", 0):
        fixed = {g: [grp for grp in gl if grp and grp[0].kind != "ds"] for g, gl in fixed.items()}
        for m in mf: m.need = ()
    seq, left = schedule(mf, fixed, stream, PRE, head=resc_check())
    assert left == PRE or left == [] or opt("nods", 0), (left, PRE)
    return seq

def tail(p, qs=False):
    fixed = {}; mf = []
    head = [raw("s_waitcnt lgkmcnt(0)", "wait", 0.5)] + resc_check()
    pre = []
    for i in range(32):
        kc, db = i >> 3, i & 7
        a = ds_v(i % NVF, kc, db, 0, p); b = ds_v(i % NVF, kc, db, 1, p)
        if i < DVD:
            head.extend([a, b]); pre.extend([a.dsid, b.dsid])
        else:
            fixed.setdefault(min(i - DVD, BARG - 33), []).extend([[a], [b]])
        mf.append(mfma_pv(p, kc, db, i % NVF, [a.dsid, b.dsid]))
    dg = dma_k(p) + dma_v(1 - p)
    if qs:
        addfix(fixed, spread(q_dma(0, QS, S_Q2OFF), 0, 0.5))
        addfix(fixed, spread(dg, 4, 0.5))
        addfix(fixed, {13: [[raw("WAITQ", "wait", 0.5)]]})
        addfix(fixed, spread(q_reads(0, QS), 13, 0.5))
        addfix(fixed, {18: [[raw("s_waitcnt lgkmcnt(0)", "wait0", 0.5)]]})
        addfix(fixed, spread(q_dma(1, QS, S_Q2OFF) + touch_groups(), 18, 0.5))
        addfix(fixed, {BARG - 32: barrier_items()})
        addfix(fixed, spread(q_reads(1, QS), BARG - 32, 0.5))
    else:
        addfix(fixed, spread(dg + touch_groups(), 0, 1))
        addfix(fixed, {BARG - 32: barrier_items()})
    stream = []
    ec = echain(p, 1)
    for k, x in enumerate(ec): stream.append(([x], 0, 13 if k < 33 else 21))
    seq, left = schedule(mf, fixed, stream, pre, head=head)
    if qs:
        n = 0; cnt = None
        for x in seq:
            if x.text == "WAITQ":
                x.text = f"s_waitcnt vmcnt({n - 8})"; break
            if x.kind == "vmem": n += 1
        seq.append(raw("s_waitcnt lgkmcnt(0)", "wait", 0.5))
    return seq

def prologue(p, initial):
    out = []
    out.append(salu(f"s_lshl_b32 s{S_T0}, s{S_QT}, 7"))
    out.append(salu(f"s_lshl_b32 s{S_T1}, s{S_W}, 5"))
    out.append(salu(f"s_add_u32 s{S_T0}, s{S_T0}, s{S_T1}"))
    out.append(valu(f"v_and_b32 v{V_TMP}, 31, v{V_LANE}", [], [f"v{V_TMP}"]))
    out.append(valu(f"v_lshrrev_b32 v{V_TMP2}, 5, v{V_LANE}", [], [f"v{V_TMP2}"]))
    out.append(valu(f"v_lshlrev_b32 v{V_TMP2}, 2, v{V_TMP2}", [], [f"v{V_TMP2}"]))
    out.append(valu(f"v_sub_u32 v{V_TMP}, v{V_TMP}, v{V_TMP2}", [], [f"v{V_TMP}"]))
    out.append(valu(f"v_add_u32 v{V_QROW}, s{S_T0}, v{V_TMP}", [], [f"v{V_QROW}"]))
    for i in range(4): out.append(valu(f"v_mov_b32 v{V_L+i}, 0", [], [f"v{V_L+i}"]))
    out.append(salu(f"s_mov_b32 s{S_RESC}, 0"))
    out.append(salu(f"s_sub_u32 s{S_REM}, s{S_N}, 1"))
    if initial:
        out.append(raw("s_waitcnt vmcnt(0)", "wait"))
        for grp in q_reads(0, QS) + q_reads(1, 98304): out.extend(grp)
        out.append(raw("s_waitcnt lgkmcnt(0)", "wait"))
        out.append(raw("s_barrier", "bar"))
    out += stamp()
    fixed = {}; mf = []; kid = {}; pre = []
    for i in range(32):
        x = ds_k(i % NKF, i & 15, i >> 4, p); kid[i] = x.dsid
        if i < DKD: out.append(x); pre.append(x.dsid)
        else: fixed.setdefault(i - DKD, []).append([x])
        mf.append(mfma_qk(p, i >> 4, i & 15, i % NKF, [kid[i]]))
    stream = [([valu(f"v_accvgpr_write_b32 a{A_O+r}, 0", [], [f"a{A_O+r}"])], 0, None) for r in range(128)]
    if initial: addfix(fixed, spread(dma_k(1) + dma_v(0), 0, 1))
    seq, left = schedule(mf, fixed, stream, pre, head=out)
    seq.append(raw("s_waitcnt vmcnt(0) lgkmcnt(0)", "wait0"))
    seq.append(raw("s_barrier", "bar"))
    seq += stamp()
    if not initial: seq += pub_check()
    seq += k_prereads(1 - p)
    seq.append(raw("s_nop 7", "nop"))
    seq += mask_check(p, 0) + mask_check(p, 1)
    seq += max16(p, 0, True) + max16(p, 1, False) + crosshalf_max()
    seq.append(valu(f"v_mov_b32 v{V_M}, v{V_PM}", [f"v{V_PM}"], [f"v{V_M}"]))
    seq.append(valu(f"v_add_f32 v{V_MT}, {hex(f2u(TRAW))}, v{V_PM}", [f"v{V_PM}"], [f"v{V_MT}"]))
    seq.append(valu(f"v_mul_f32 v{V_MC}, s{S_C}, v{V_PM}", [f"v{V_PM}"], [f"v{V_MC}"]))
    seq.append(salu(f"s_add_u32 s{S_KT}, s{S_KT}, 1"))
    seq += echain(p, 0)
    return seq

def txt(seq):
    return [("" if x.kind == "label" else "  ") + x.text for x in seq]

def lsum_lines():
    return [f"  v_add_f32 v{V_L}, v{V_L}, v{V_L+1}", f"  v_add_f32 v{V_L+2}, v{V_L+2}, v{V_L+3}",
            f"  v_add_f32 v{V_L}, v{V_L}, v{V_L+2}"]
def crosshalf_add(reg):
    return [f"  v_mov_b32 v{V_TMP}, v{reg}", "  s_nop 1", f"  v_permlane32_swap_b32 v{V_TMP}, v{reg}",
            f"  v_add_f32 v{reg}, v{reg}, v{V_TMP}"]

def store_out(merge):
    t = [f"  s_lshl_b32 s{S_T0}, s{S_QT}, 16", f"  s_add_u32 s{S_T0}, s{S_T0}, s{S_HB}",
         f"  s_lshl_b32 s{S_T1}, s{S_W}, 14", f"  s_add_u32 s{S_T0}, s{S_T0}, s{S_T1}",
         f"  v_and_b32 v41, 31, v{V_LANE}", f"  v_lshrrev_b32 v42, 5, v{V_LANE}",
         f"  v_lshlrev_b32 v40, 9, v41", f"  v_lshl_add_u32 v40, v42, 3, v40", f"  v_add_u32 v40, s{S_T1}, v40",
         f"  v_lshlrev_b32 v41, 4, v41"]
    t += [f"  v_and_b32 v43, 31, v{V_LANE}", f"  v_xor_b32 v43, v43, v42", f"  v_lshlrev_b32 v43, 4, v43",
          f"  v_lshl_add_u32 v43, v42, 9, v43", f"  v_add_u32 v43, s{S_T1}, v43"]
    stA = []; stB = []
    for db in range(8):
        for pr in range(2):
            n = db * 2 + pr
            tb = 64 + 32 * (n & 1)
            r0 = 16 * db + 8 * pr
            A = []; B = []
            for i in range(8): A.append(f"  v_accvgpr_read_b32 v{tb+i}, a{A_O+r0+i}")
            ob = []
            if merge:
                p, b = ob_reg(n)
                for i in range(4):
                    A.append(f"  v_lshlrev_b32 v{tb+16+2*i}, 16, v{b+i}")
                    A.append(f"  v_and_b32 v{tb+17+2*i}, 0xffff0000, v{b+i}")
                ob = [tb + 16, tb + 18, tb + 20, tb + 22]
            for gsel in range(2):
                ch = 4 * db + 2 * pr + gsel
                A.append(f"  v_xor_b32 v{tb+12+gsel}, {hex(ch << 4)}, v41")
            for gsel in range(2):
                A.append(f"  v_add_u32 v{tb+12+gsel}, v{tb+12+gsel}, v40")
            for i in range(0, 8, 2):
                B.append(f"  v_pk_mul_f32 v[{tb+i}:{tb+i+1}], v[{tb+i}:{tb+i+1}], v[{V_FA}:{V_FA+1}]")
            if merge:
                for i in range(0, 8, 2):
                    b = ob[i // 2]
                    B.append(f"  v_pk_fma_f32 v[{tb+i}:{tb+i+1}], v[{b}:{b+1}], v[{V_FB}:{V_FB+1}], v[{tb+i}:{tb+i+1}]")
            for i in range(4):
                B.append(f"  v_cvt_pk_bf16_f32 v{tb+8+i}, v{tb+2*i}, v{tb+2*i+1}")
            for gsel in range(2):
                B.append(f"  ds_write_b64 v{tb+12+gsel}, v[{tb+8+2*gsel}:{tb+9+2*gsel}]")
            stA.append(A); stB.append(B)
    t += stA[0]
    for n in range(16):
        X = list(stB[n]); Y = list(stA[n + 1]) if n < 15 else []
        while X or Y:
            if X: t.append(X.pop(0))
            if Y: t.append(Y.pop(0))
    t.append("  s_waitcnt lgkmcnt(0)")
    for k in range(16):
        t.append(f"  v_xor_b32 v{128+k}, {hex((2 * k) << 4)}, v43")
        t.append(f"  ds_read_b128 v[{64+4*k}:{64+4*k+3}], v{128+k} offset:{k*1024}")
    for k in range(16):
        if k % 4 == 0 and k: t.append(f"  s_add_u32 s{S_T0}, s{S_T0}, 0x1000")
        t.append(f"  s_waitcnt lgkmcnt({15-k})")
        t.append(f"  buffer_store_dwordx4 v[{64+4*k}:{64+4*k+3}], v{V_WS}, s[{S_O}:{S_O+3}], s{S_T0} offen offset:{(k&3)*1024}{NTO}")
    return t

def main():
    L = []
    L += ["; Kernarg layout (48 bytes): q, k, v, out, debug, ws pointers (bf16 tensors 1x16x2048x256)",
          "; causal flash attention fwd: 256 WGs x 4 waves, 128 q rows per WG, split-K pairs for causal balance",
          "; @launch grid=(256,1,1) block=(256,1,1) lds=163840",
          '.amdgcn_target "amdgcn-amd-amdhsa--gfx950"', ".text", f".globl {NAME}", ".p2align 8",
          f".type {NAME},@function", f"{NAME}:"]
    a = L.append
    a("  s_cmp_ge_u32 s2, 256"); a("  s_cbranch_scc1 L_end")
    a("  s_load_dwordx4 s[80:83], s[0:1], 0"); a("  s_load_dwordx4 s[84:87], s[0:1], 16"); a("  s_load_dwordx4 s[88:91], s[0:1], 32")
    if STAMPS:
        a("  s_mov_b32 s94, 0"); a("  v_mov_b32 v60, 0"); L.extend(txt(stamp()))
        a("  s_memrealtime s[92:93]"); a("  s_waitcnt lgkmcnt(0)"); a("  v_writelane_b32 v60, s92, 62")
    a(f"  v_and_b32 v{V_LANE}, 63, v0"); a(f"  v_lshrrev_b32 v{V_TMP}, 6, v0"); a("  s_nop 0")
    a(f"  v_readfirstlane_b32 s{S_W}, v{V_TMP}")
    a(f"  s_and_b32 s{S_T0}, s2, 7"); a(f"  s_lshr_b32 s{S_T1}, s2, 3"); a(f"  s_and_b32 s{S_T2}, s{S_T1}, 1")
    a(f"  s_lshl_b32 s{S_T0}, s{S_T0}, 1"); a(f"  s_or_b32 s{S_T0}, s{S_T0}, s{S_T2}")
    a(f"  s_lshr_b32 s{S_T1}, s{S_T1}, 1")
    a(f"  s_lshl_b32 s{S_HB}, s{S_T0}, 20")
    a(f"  s_mov_b32 s{S_C}, {hex(f2u(CSCALE))}")
    a(f"  s_mov_b32 s{S_OOB}, 0x7ff00000")
    a(f"  s_mov_b32 s{S_KF}, 0"); a(f"  s_mov_b32 s{S_VF}, 0")
    a(f"  s_mov_b32 s{S_SEG2}, s{S_HB}")
    a(f"  s_lshl_b32 s{S_M0B}, s{S_W}, 13")
    a(f"  s_mov_b32 s{S_R}, s{S_T1}"); a(f"  s_mov_b32 s{S_TP}, {1 if opt('kvtouch', 1) else 2}")
    a(f"  s_add_u32 s{S_TAO}, s{S_T1}, 16"); a(f"  s_lshl_b32 s{S_TAO}, s{S_TAO}, 15"); a(f"  s_add_u32 s{S_TAO}, s{S_TAO}, s{S_HB}"); a(f"  s_mov_b32 s{S_TBO}, s{S_TAO}")
    if not opt('kvtouch', 1): a(f"  s_mov_b32 s{S_TAO}, s{S_OOB}"); a(f"  s_mov_b32 s{S_TBO}, s{S_OOB}")
    dl = [int(c) for c in opt("delta", "22100000")]
    dtab = sum(d << (2 * t) for t, d in enumerate(dl))
    a(f"  s_sub_u32 s{S_T2}, 15, s{S_T1}"); a(f"  s_min_u32 s{S_TSMALL}, s{S_T1}, s{S_T2}")
    a(f"  s_lshl_b32 s{S_T2}, s{S_TSMALL}, 1"); a(f"  s_lshr_b32 s{S_T3}, {hex(dtab)}, s{S_T2}"); a(f"  s_and_b32 s{S_T3}, s{S_T3}, 3")
    a(f"  s_sub_u32 s{S_N1}, 15, s{S_T2}"); a(f"  s_sub_u32 s{S_N1}, s{S_N1}, s{S_T3}")
    a(f"  s_cmp_lt_u32 s{S_T1}, 8"); a("  s_cbranch_scc0 L_typeA")
    a(f"  s_sub_u32 s{S_QT}, 15, s{S_T1}")
    a(f"  s_sub_u32 s{S_NT}, 17, s{S_T3}")
    a(f"  s_mov_b32 s{S_N}, s{S_N1}"); a(f"  s_mov_b32 s{S_KT}, 0"); a(f"  s_mov_b32 s{S_MSK}, 1000"); a(f"  s_mov_b32 s{S_MODE}, 0")
    a(f"  s_lshl_b32 s{S_Q2OFF}, s{S_T1}, 16"); a(f"  s_add_u32 s{S_Q2OFF}, s{S_Q2OFF}, s{S_HB}")
    a(f"  s_mov_b32 s{S_HOOK}, {0 if LOOK else 2}"); a(f"  s_mov_b32 s{S_KTJ}, 100000"); a(f"  s_mov_b32 s{S_POLL}, 100000")
    a("  s_branch L_common")
    a("L_typeA:")
    a(f"  s_mov_b32 s{S_QT}, s{S_T1}")
    a(f"  s_add_u32 s{S_NT}, 17, s{S_T3}")
    a(f"  s_mov_b32 s{S_N}, s{S_NT}"); a(f"  s_lshl_b32 s{S_MSK}, s{S_T1}, 1"); a(f"  s_mov_b32 s{S_MODE}, 2")
    if opt("rot", 1):
        a(f"  s_lshl_b32 s{S_SEG2}, s{S_N1}, 15"); a(f"  s_add_u32 s{S_SEG2}, s{S_SEG2}, s{S_HB}")
        a(f"  s_mov_b32 s{S_KT}, 15"); a(f"  s_add_u32 s{S_KTJ}, s{S_MSK}, 2"); a(f"  s_sub_u32 s{S_N1}, s{S_KTJ}, 15")
    else:
        a(f"  s_mov_b32 s{S_KT}, s{S_N1}"); a(f"  s_mov_b32 s{S_N1}, s{S_NT}"); a(f"  s_mov_b32 s{S_KTJ}, 100000")
    a(f"  s_mov_b32 s{S_Q2OFF}, s{S_OOB}")
    a(f"  s_mov_b32 s{S_HOOK}, {0 if LOOK else 2}")
    a(f"  s_lshl_b32 s{S_POLL}, s{S_TSMALL}, 1"); a(f"  s_add_u32 s{S_POLL}, s{S_POLL}, {opt('pollat', 2)}"); a(f"  s_add_u32 s{S_POLL}, s{S_POLL}, s{S_T3}"); a(f"  s_add_u32 s{S_POLL}, s{S_POLL}, s{S_T3}")
    a("L_common:")
    a(f"  s_mov_b32 s{S_STARTED}, 0")
    a(f"  s_lshl_b32 s{S_PAIR}, s{S_T0}, 3"); a(f"  s_add_u32 s{S_PAIR}, s{S_PAIR}, s{S_TSMALL}")
    a(f"  s_mul_i32 s{S_WSOFF}, s{S_PAIR}, 0x21000")
    a(f"  s_lshl_b32 s{S_KOFF}, s{S_KT}, 15"); a(f"  s_add_u32 s{S_KOFF}, s{S_KOFF}, s{S_HB}"); a(f"  s_mov_b32 s{S_VOFF}, s{S_KOFF}")
    a(f"  s_lshl_b32 s{S_QOFF}, s{S_QT}, 16"); a(f"  s_add_u32 s{S_QOFF}, s{S_QOFF}, s{S_HB}")
    l = V_LANE; t0 = V_T8; t1 = V_T8 + 1; t2 = V_T8 + 2; t3 = V_T8 + 3; t4 = V_T8 + 4
    a(f"  v_and_b32 v{t0}, 31, v{l}")
    a(f"  v_lshrrev_b32 v{t1}, 5, v{l}")
    a(f"  v_and_b32 v{t2}, 15, v{l}")
    a(f"  v_xor_b32 v{t4}, v{t0}, v{t1}")
    a(f"  v_lshlrev_b32 v{t4}, 4, v{t4}"); a(f"  v_lshl_add_u32 v{t4}, v{t1}, 9, v{t4}"); a(f"  v_add_u32 v{t4}, s{S_M0B}, v{t4}")
    for q in range(8):
        a(f"  v_xor_b32 v{V_DK+q}, {hex((2*q) << 4 | (q>>2)*4096)}, v{t4}")
    a(f"  v_lshrrev_b32 v{t3}, 4, v{l}"); a(f"  v_xor_b32 v{V_QDB}, v{t2}, v{t3}"); a(f"  v_lshlrev_b32 v{V_QDB}, 4, v{V_QDB}")
    a(f"  v_lshl_add_u32 v{V_QDB}, v{t3}, 9, v{V_QDB}"); a(f"  s_lshl_b32 s{S_T1}, s{S_W}, 14"); a(f"  v_add_u32 v{V_QDB}, s{S_T1}, v{V_QDB}")
    a(f"  v_xor_b32 v{V_QRB}, v{t1}, v{t2}"); a(f"  v_lshlrev_b32 v{V_QRB}, 4, v{V_QRB}"); a(f"  v_lshl_add_u32 v{V_QRB}, v{t0}, 8, v{V_QRB}")
    a(f"  s_add_u32 s{S_T1}, s{S_M0B}, 98304"); a(f"  v_add_u32 v{V_QRB}, s{S_T1}, v{V_QRB}")
    L.extend(txt(stamp()))
    a("  s_waitcnt lgkmcnt(0)")
    L.extend(txt(stamp()))
    for (srd, lo, n) in ((S_K, 82, 0x1000000), (S_Q, 80, 0x1000000)):
        a(f"  s_mov_b32 s{srd}, s{lo}"); a(f"  s_and_b32 s{srd+1}, s{lo+1}, 0xffff"); a(f"  s_mov_b32 s{srd+2}, {hex(n)}"); a(f"  s_mov_b32 s{srd+3}, 0x00020000")
    for grp in dma_k(0): L += txt(grp)
    KEEP = [f"  v_mov_b32 v{128+i}, v{V_T8+i}" for i in range(3)]
    L += KEEP
    for grp in q_dma(0, QS, S_QOFF) + q_dma(1, 98304, S_QOFF): L += txt(grp)
    L += [f"  v_mov_b32 v{V_T8+i}, v{128+i}" for i in range(3)]
    L.extend(txt(stamp()))
    for (srd, lo, n) in ((S_V, 84, 0x1000000), (S_O, 86, 0x1000000), (S_DBG, 88, 256), (S_WS, 90, 0x10000000)):
        a(f"  s_mov_b32 s{srd}, s{lo}"); a(f"  s_and_b32 s{srd+1}, s{lo+1}, 0xffff"); a(f"  s_mov_b32 s{srd+2}, {hex(n)}"); a(f"  s_mov_b32 s{srd+3}, 0x00020000")
    L += set_touch(S_K, S_V)
    a(f"  v_xor_b32 v{t3}, v{t1}, v{t2}"); a(f"  v_lshlrev_b32 v{t3}, 4, v{t3}"); a(f"  v_lshl_add_u32 v{t3}, v{t0}, 9, v{t3}")
    for c7 in range(8):
        a(f"  v_xor_b32 v{V_KA+c7}, {hex((2*c7) << 4)}, v{t3}")
    a(f"  v_lshlrev_b32 v{t3}, 2, v{t1}"); a(f"  v_xor_b32 v{t3}, v{t3}, v{t0}")
    a(f"  v_lshlrev_b32 v{t3}, 4, v{t3}"); a(f"  v_lshl_add_u32 v{t3}, v{t1}, 9, v{t3}"); a(f"  v_add_u32 v{V_DV}, s{S_M0B}, v{t3}")
    a(f"  v_xor_b32 v{V_DV+1}, 0x80, v{V_DV}")
    a(f"  v_lshrrev_b32 v{t3}, 2, v{t2}")
    a(f"  v_lshl_add_u32 v{t4}, v{t1}, 2, v{t3}")
    a(f"  v_lshlrev_b32 v{t4}, 9, v{t4}")
    a(f"  v_bfe_u32 v{t0}, v{l}, 4, 1"); a(f"  v_lshl_add_u32 v{t4}, v{t0}, 5, v{t4}")
    a(f"  v_and_b32 v{t0}, 3, v{l}"); a(f"  v_lshl_add_u32 v{t4}, v{t0}, 3, v{t4}")
    a(f"  v_add_u32 v{t4}, 0x10000, v{t4}")
    for dbl in range(4):
        a(f"  v_xor_b32 v{t0}, {dbl}, v{t3}"); a(f"  v_lshl_add_u32 v{V_VA+dbl}, v{t0}, 6, v{t4}")
    a(f"  v_lshlrev_b32 v{V_WS}, 4, v{l}")
    a(f"  v_lshlrev_b32 v{V_TOUCH}, 7, v0")
    a(f"  v_mov_b32 v{V_NINF}, 0xff800000")
    a(f"  v_mov_b32 v{V_FLAG}, 0")
    if opt("nods", 0):
        for r in range(128, 200): a(f"  v_mov_b32 v{r}, 0")
    pro_i = prologue(0, True); check_hazards(pro_i, "pro_i")
    L += txt(pro_i)
    a("L_after_pro0:")
    a(f"  s_cmp_eq_u32 s{S_REM}, 0"); a("  s_cbranch_scc1 L_tail0")
    b0 = body(0); b1 = body(1)
    check_hazards(pro_i + b0 + b1 + b0, "loop")
    a("L_body0:"); L += txt(b0)
    a("L_after_pro1:")
    a(f"  s_cmp_eq_u32 s{S_REM}, 0"); a("  s_cbranch_scc1 L_tail1")
    a("L_body1:"); L += txt(b1)
    a(f"  s_cmp_lg_u32 s{S_REM}, 0"); a("  s_cbranch_scc1 L_body0")
    t0s = tail(0); t1s = tail(1)
    check_hazards(b1 + t0s, "tail0"); check_hazards(b0 + t1s, "tail1")
    a("L_tail0:"); a(f"  s_cmp_eq_u32 s{S_MODE}, 0"); a("  s_cbranch_scc1 L_tailq0"); L += txt(t0s); a("  s_branch L_epi")
    tq0 = tail(0, True); tq1 = tail(1, True)
    check_hazards(b1 + tq0, "tailq0"); check_hazards(b0 + tq1, "tailq1")
    a("L_tailq0:"); L += txt(tq0); a("  s_branch L_epi")
    a("L_tailq1:"); L += txt(tq1); a("  s_branch L_epi")
    a("L_tail1:"); a(f"  s_cmp_eq_u32 s{S_MODE}, 0"); a("  s_cbranch_scc1 L_tailq1"); L += txt(t1s)
    a("L_epi:")
    L.extend(txt(stamp()))
    a("  s_nop 15"); a("  s_nop 15")
    L += lsum_lines()
    a(f"  s_cmp_eq_u32 s{S_MODE}, 1"); a("  s_cbranch_scc1 L_final")
    a(f"  s_cmp_eq_u32 s{S_MODE}, 2"); a("  s_cbranch_scc1 L_merge")
    L += ml_addr_lines()
    a(f"  v_mov_b32 v{V_T8}, v{V_M}"); a(f"  v_mov_b32 v{V_T8+1}, v{V_L}")
    a(f"  buffer_store_dwordx2 v[{V_T8}:{V_T8+1}], v{V_TMP2}, s[{S_WS}:{S_WS+3}], s{S_T1} offen sc1")
    for g in range(NCH):
        p, r = ob_reg(g)
        tb = 64 + 8 * (g & 3)
        for i in range(8): a(f"  v_accvgpr_read_b32 v{tb+i}, a{A_O+8*g+i}")
        if g:
            pp, pr_ = ob_reg(g - 1); ptb = 64 + 8 * ((g - 1) & 3)
            for i in range(4): a(f"  v_cvt_pk_bf16_f32 v{pr_+i}, v{ptb+2*i}, v{ptb+2*i+1}")
    pp, pr_ = ob_reg(NCH - 1); ptb = 64 + 8 * ((NCH - 1) & 3)
    for i in range(4): a(f"  v_cvt_pk_bf16_f32 v{pr_+i}, v{ptb+2*i}, v{ptb+2*i+1}")
    a(f"  s_cmp_gt_u32 s{S_TSMALL}, {opt('tdirect', 2)}"); a("  s_cbranch_scc1 L_copy")
    L += ws_addr_lines()
    for g in range(NCH):
        p, r = ob_reg(g)
        if g and g % 4 == 0: a(f"  s_add_u32 s{S_T0}, s{S_T0}, 0x1000")
        a(f"  buffer_store_dwordx4 v[{r}:{r+3}], v{V_WS}, s[{S_WS}:{S_WS+3}], s{S_T0} offen offset:{(g&3)*1024} sc1")
    a(f"  s_bitset1_b32 s{S_HOOK}, 0")
    a("  s_branch L_sw2")
    a("L_copy:")
    a(f"  s_bitset1_b32 s{S_HOOK}, 3"); a(f"  s_mov_b32 s{S_PCH}, 0")
    a("L_sw2:")
    a(f"  s_mov_b32 s{S_QT}, s{S_TSMALL}"); a(f"  s_lshl_b32 s{S_MSK}, s{S_TSMALL}, 1"); a(f"  s_add_u32 s{S_N}, s{S_MSK}, 2")
    a(f"  s_mov_b32 s{S_KT}, 0"); a(f"  s_mov_b32 s{S_MODE}, 1")
    a(f"  s_and_b32 s{S_T0}, s{S_N1}, 1"); a(f"  s_cmp_eq_u32 s{S_T0}, 1"); a("  s_cbranch_scc1 L_pro1")
    p0 = prologue(0, False); check_hazards(p0 + b0, "pro0")
    L += txt(p0); a("  s_branch L_after_pro0")
    a("L_pro1:")
    p1 = prologue(1, False); check_hazards(p1 + b1, "pro1")
    L += txt(p1); a("  s_branch L_after_pro1")
    a("L_final:")
    a(f"  s_and_b32 s{S_HOOK}, s{S_HOOK}, 9"); a("  s_cbranch_scc0 L_final2")
    a("L_flushB:")
    a(f"  s_bitcmp1_b32 s{S_HOOK}, 3"); a("  s_cbranch_scc0 L_flushB2")
    a(f"  s_call_b64 s[{S_LINK}:{S_LINK+1}], L_hook"); a(f"  s_bitset0_b32 s{S_HOOK}, 0"); a("  s_branch L_flushB")
    a("L_flushB2:")
    a("  s_waitcnt vmcnt(0)"); a("  s_barrier"); a(f"  s_mov_b32 s{S_HOOK}, 1"); a(f"  s_call_b64 s[{S_LINK}:{S_LINK+1}], L_hook")
    a("L_final2:")
    L += crosshalf_add(V_L)
    a(f"  v_rcp_f32 v{V_FA}, v{V_L}"); a("  s_nop 0"); a(f"  v_mov_b32 v{V_FA+1}, v{V_FA}")
    if opt("twice", 0):
        a("  s_mov_b32 s95, 2"); a("L_twice:"); L.extend(txt(stamp()))
    L += store_out(False)
    if opt("twice", 0):
        a("  s_sub_u32 s95, s95, 1"); a("  s_cmp_lg_u32 s95, 0"); a("  s_cbranch_scc1 L_twice")
    L += stamp_store()
    a("  s_endpgm")
    a("L_merge:")
    a(f"  s_cmp_eq_u32 s{S_STARTED}, 0"); a(f"  s_cselect_b32 s{S_T2}, 4, 0"); a(f"  s_or_b32 s{S_HOOK}, s{S_HOOK}, s{S_T2}")
    a(f"  s_mov_b32 s{S_T2}, 0x400000")
    a("L_flushA:")
    a(f"  s_and_b32 s{S_HOOK}, s{S_HOOK}, 0x14"); a("  s_cbranch_scc0 L_have")
    a("  s_waitcnt vmcnt(0)")
    a(f"  s_call_b64 s[{S_LINK}:{S_LINK+1}], L_hook")
    a(f"  s_sub_u32 s{S_T2}, s{S_T2}, 1"); a(f"  s_cmp_lg_u32 s{S_T2}, 0"); a("  s_cbranch_scc1 L_flushA")
    a("L_have:")
    L.extend(txt(stamp()))
    a("  s_waitcnt vmcnt(0)")
    a(f"  v_max_f32 v{V_TMP}, v{V_M}, v{V_ML}")
    a(f"  v_sub_f32 v{V_M}, v{V_M}, v{V_TMP}"); a(f"  v_sub_f32 v{V_ML}, v{V_ML}, v{V_TMP}")
    a(f"  v_mul_f32 v{V_M}, s{S_C}, v{V_M}"); a(f"  v_mul_f32 v{V_ML}, s{S_C}, v{V_ML}")
    a(f"  v_exp_f32 v{V_M}, v{V_M}"); a(f"  v_exp_f32 v{V_ML}, v{V_ML}"); a("  s_nop 0")
    a(f"  v_mul_f32 v{V_L}, v{V_L}, v{V_M}"); a(f"  v_fma_f32 v{V_L}, v{V_ML+1}, v{V_ML}, v{V_L}")
    L += crosshalf_add(V_L)
    a(f"  v_rcp_f32 v{V_L}, v{V_L}"); a("  s_nop 0")
    a(f"  v_mul_f32 v{V_FA}, v{V_M}, v{V_L}"); a(f"  v_mul_f32 v{V_FB}, v{V_ML}, v{V_L}")
    a(f"  v_mov_b32 v{V_FA+1}, v{V_FA}"); a(f"  v_mov_b32 v{V_FB+1}, v{V_FB}")
    L += store_out(True)
    L += stamp_store()
    a("L_end:")
    a("  s_endpgm")
    L += hook_sub()
    L += OOL
    L += ['.section .rodata,"a"', ".p2align 6", f".amdhsa_kernel {NAME}",
          "  .amdhsa_next_free_vgpr 512", "  .amdhsa_next_free_sgpr 102", "  .amdhsa_accum_offset 256",
          "  .amdhsa_group_segment_fixed_size 0", "  .amdhsa_kernarg_size 48", "  .amdhsa_user_sgpr_count 2",
          "  .amdhsa_user_sgpr_kernarg_segment_ptr 1", "  .amdhsa_system_sgpr_workgroup_id_x 1", ".end_amdhsa_kernel"]
    open(OUT, "w").write("\n".join(L) + "\n")

main()
```

```python
import sys, struct, math

OUT = sys.argv[1] if len(sys.argv) > 1 else "standalone__softmax_full_causal__prompt.s"
OPT = dict(a.split("=") for a in sys.argv[2:])
def opt(name, default):
    return type(default)(OPT.get(name, default))

NAME = "standalone__softmax_full_causal__prompt_kernel"

def f2u(x):
    return struct.unpack("<I", struct.pack("<f", x))[0]

CSCALE = math.log2(math.e) / 16.0
TRAW = 8.0 / CSCALE

V_LANE = 1
V_KA = 2
V_VA = 10
V_DK = 14
V_DV = 22
V_QO = 24
V_WS = 25
V_QROW = 26
V_M = 27; V_MT = 28; V_MC = 29
V_L = 30
V_ALPHA = 34; V_PM = 35; V_TMP = 36; V_NINF = 37; V_THR = 38; V_TMP2 = 39
V_T8 = 40
V_FA = 44; V_FB = 46
V_TOUCH = 48; V_DUMMY = 49
V_S = [64, 96]
V_KF = 128; NKF = 8
V_VF = 160; NVF = 10
A_O = 0; A_Q = 128; A_Q2 = 192

S_Q, S_K, S_V, S_O, S_WS, S_DBG = 4, 8, 12, 16, 20, 24
S_W = 28; S_HB = 29; S_C = 30; S_REM = 31; S_KT = 32; S_MSK = 33
S_KOFF = 34; S_VOFF = 35; S_VOFF2 = 36; S_KF = 37; S_VF = 38; S_N1 = 39; S_SEG2 = 40; S_NT = 41
S_RESC = 42; S_PUB = 43; S_M0B = 44; S_OOB = 45; S_MODE = 48; S_QT = 49; S_N = 50; S_PAIR = 51
S_T0 = 52; S_T1 = 53; S_T2 = 54; S_T3 = 55; S_WSOFF = 46; S_QOFF = 47
S_MK = 56
S_TSMALL = 64

DKD = opt("dk", 4)
DVD = opt("dv", 6)
BARG = 63 - DKD
NODMA = opt("nodma", 0)

class I:
    __slots__ = ("text", "kind", "rd", "wr", "cost", "dsid", "need", "srcc")
    def __init__(self, text, kind, rd=(), wr=(), cost=1.0, dsid=None, need=(), srcc=()):
        self.text = text; self.kind = kind; self.rd = set(rd); self.wr = set(wr)
        self.cost = cost; self.dsid = dsid; self.need = tuple(need); self.srcc = set(srcc)

def R(p, b, n=1):
    return [f"{p}{b+i}" for i in range(n)]
def rs(p, b, n):
    return f"{p}[{b}:{b+n-1}]" if n > 1 else f"{p}{b}"

_lab = [0]
def newlab(s):
    _lab[0] += 1
    return f"L_{s}_{_lab[0]}"

def valu(text, rd, wr, cost=1.0): return I(text, "valu", rd, wr, cost)
def trans(text, rd, wr): return I(text, "trans", rd, wr, 2.0)
def salu(text, cost=0.5): return I(text, "salu", (), (), cost)
def label(l): return I(l + ":", "label", cost=0.0)
def raw(text, kind="other", cost=1.0): return I(text, kind, cost=cost)

_ds = [0]
def ds_k(frag, c, kb, slot):
    _ds[0] += 1
    d = V_KF + 4 * frag
    off = slot * 32768 + kb * 16384 + (c >> 3) * 256
    return I(f"ds_read_b128 {rs('v', d, 4)}, v{V_KA + (c & 7)} offset:{off}", "ds", [f"v{V_KA + (c & 7)}"], R("v", d, 4), 1.0, dsid=_ds[0])
def ds_v(frag, kc, db, half, slot):
    _ds[0] += 1
    d = V_VF + 4 * frag + 2 * half
    off = slot * 32768 + kc * 8192 + half * 4096 + (db >> 2) * 256
    return I(f"ds_read_b64_tr_b16 {rs('v', d, 2)}, v{V_VA + (db & 3)} offset:{off}", "ds", [f"v{V_VA + (db & 3)}"], R("v", d, 2), 1.0, dsid=_ds[0])

def mfma_qk(p, kb, c, frag, need):
    s = V_S[p] + 16 * kb
    a = V_KF + 4 * frag
    q = A_Q + 4 * c
    cc = "0" if c == 0 else rs("v", s, 16)
    rd = R("v", a, 4) + R("a", q, 4)
    return I(f"v_mfma_f32_32x32x16_bf16 {rs('v', s, 16)}, {rs('v', a, 4)}, {rs('a', q, 4)}, {cc}", "mfma",
             rd, R("v", s, 16), 2.0, need=need, srcc=([] if c == 0 else R("v", s, 16)))
def mfma_pv(p, kc, db, frag, need):
    pb = V_S[p] + 16 * (kc >> 1) + 8 * (kc & 1)
    a = V_VF + 4 * frag
    o = A_O + 16 * db
    return I(f"v_mfma_f32_32x32x16_bf16 {rs('a', o, 16)}, {rs('v', a, 4)}, {rs('v', pb, 4)}, {rs('a', o, 16)}", "mfma",
             R("v", a, 4) + R("v", pb, 4), R("a", o, 16), 2.0, need=need, srcc=R("a", o, 16))

def echain(p, kb):
    s = V_S[p] + 16 * kb
    out = []
    def fma(i): return valu(f"v_fma_f32 v{s+i}, v{s+i}, s{S_C}, -v{V_MC}", [f"v{s+i}", f"v{V_MC}"], [f"v{s+i}"])
    def ex(i): return trans(f"v_exp_f32 v{s+i}, v{s+i}", [f"v{s+i}"], [f"v{s+i}"])
    def add(i):
        l = V_L + (i & 3)
        return valu(f"v_add_f32 v{l}, v{l}, v{s+i}", [f"v{l}", f"v{s+i}"], [f"v{l}"])
    def pk(i):
        d = s + 8 * (i >> 3) + ((i & 7) >> 1)
        return valu(f"v_cvt_pk_bf16_f32 v{d}, v{s+i}, v{s+i+1}", [f"v{s+i}", f"v{s+i+1}"], [f"v{d}"])
    for i in range(19):
        if i < 16: out.append(fma(i))
        if 1 <= i <= 16: out.append(ex(i - 1))
        if 3 <= i <= 18:
            out.append(add(i - 3))
            if (i - 3) & 1: out.append(pk(i - 4))
    return out

def max16(p, kb, first):
    s = V_S[p] + 16 * kb
    out = []
    if first:
        out.append(valu(f"v_max3_f32 v{V_PM}, v{s}, v{s+1}, v{s+2}", R("v", s, 3), [f"v{V_PM}"]))
        i = 3
    else:
        i = 0
    while i + 1 < 16:
        out.append(valu(f"v_max3_f32 v{V_PM}, v{V_PM}, v{s+i}, v{s+i+1}", [f"v{V_PM}", f"v{s+i}", f"v{s+i+1}"], [f"v{V_PM}"]))
        i += 2
    if i < 16:
        out.append(valu(f"v_max_f32 v{V_PM}, v{V_PM}, v{s+i}", [f"v{V_PM}", f"v{s+i}"], [f"v{V_PM}"]))
    return out

def crosshalf_max():
    return [valu(f"v_mov_b32 v{V_TMP}, v{V_PM}", [f"v{V_PM}"], [f"v{V_TMP}"]),
            raw("s_nop 1", "nop", 1.0),
            I(f"v_permlane32_swap_b32 v{V_TMP}, v{V_PM}", "perm", [f"v{V_TMP}", f"v{V_PM}"], [f"v{V_TMP}", f"v{V_PM}"]),
            valu(f"v_max_f32 v{V_PM}, v{V_PM}, v{V_TMP}", [f"v{V_PM}", f"v{V_TMP}"], [f"v{V_PM}"])]

OOL = []

def mask_check(p, kb):
    lm = newlab(f"mask{kb}"); lr = newlab("ret")
    s = V_S[p] + 16 * kb
    t = [f"{lm}:", f"  s_lshl_b32 s{S_T0}, s{S_KT}, 6", f"  v_subrev_u32 v{V_THR}, s{S_T0}, v{V_QROW}"]
    for g in range(4):
        for r4 in range(4):
            r = 4 * g + r4
            ko = 32 * kb + 8 * g + r4
            t.append(f"  v_cmp_gt_i32 s[{S_MK+2*r4}:{S_MK+2*r4+1}], {ko}, v{V_THR}")
        for r4 in range(4):
            r = 4 * g + r4
            t.append(f"  v_cndmask_b32 v{s+r}, v{s+r}, v{V_NINF}, s[{S_MK+2*r4}:{S_MK+2*r4+1}]")
    t.append(f"  s_branch {lr}")
    OOL.extend(t)
    return [salu(f"s_cmp_ge_u32 s{S_KT}, s{S_MSK}"),
            I(f"s_cbranch_scc1 {lm}", "salu", R("v", s, 16), R("v", s, 16), 0.5),
            label(lr)]

def rare_check():
    lm = newlab("rare"); lr = newlab("ret")
    t = [f"{lm}:",
         f"  v_mov_b32 v{V_TMP}, v{V_PM}", "  s_nop 1", f"  v_permlane32_swap_b32 v{V_TMP}, v{V_PM}",
         f"  v_max3_f32 v{V_TMP}, v{V_M}, v{V_PM}, v{V_TMP}",
         f"  v_sub_f32 v{V_TMP2}, v{V_M}, v{V_TMP}",
         f"  v_mul_f32 v{V_TMP2}, s{S_C}, v{V_TMP2}",
         f"  v_exp_f32 v{V_ALPHA}, v{V_TMP2}",
         f"  v_mov_b32 v{V_M}, v{V_TMP}",
         f"  v_add_f32 v{V_MT}, {hex(f2u(TRAW))}, v{V_TMP}",
         f"  v_mul_f32 v{V_MC}, s{S_C}, v{V_TMP}"]
    for i in range(4):
        t.append(f"  v_mul_f32 v{V_L+i}, v{V_L+i}, v{V_ALPHA}")
    t += [f"  s_mov_b32 s{S_RESC}, 1", f"  s_branch {lr}"]
    OOL.extend(t)
    return [valu(f"v_cmp_gt_f32 vcc, v{V_PM}, v{V_MT}", [f"v{V_PM}", f"v{V_MT}"], ["vcc"]),
            salu(f"s_cbranch_vccnz {lm}"), label(lr)]

def resc_check():
    lm = newlab("resc"); lr = newlab("ret")
    t = [f"{lm}:", "  s_nop 15", "  s_nop 15"]
    for r0 in range(0, 128, 8):
        for i in range(8): t.append(f"  v_accvgpr_read_b32 v{V_T8+i}, a{A_O+r0+i}")
        for i in range(8): t.append(f"  v_mul_f32 v{V_T8+i}, v{V_T8+i}, v{V_ALPHA}")
        for i in range(8): t.append(f"  v_accvgpr_write_b32 a{A_O+r0+i}, v{V_T8+i}")
    t += [f"  s_mov_b32 s{S_RESC}, 0", "  s_nop 1", f"  s_branch {lr}"]
    OOL.extend(t)
    return [salu(f"s_cmp_lg_u32 s{S_RESC}, 0"), salu(f"s_cbranch_scc1 {lm}"), label(lr)]

S_HOOK = S_PUB
S_Q2OFF = 65; S_KTJ = 66
V_FLAG = 61 if not opt("stamps", 0) else 63
V_ML = 58
def ob_reg(g):
    return ("v", 200 + 4 * g) if g < 14 else ("v", 50 + 4 * (g - 14))
NCH = 16
S_LINK = 96; S_PCH = 67; S_POLL = 98; S_STARTED = 99
NPS = opt("nps", 4)
def ws_addr_lines():
    return [f"  s_lshl_b32 s{S_T0}, s{S_W}, 14", f"  s_add_u32 s{S_T0}, s{S_T0}, s{S_WSOFF}"]
def ml_addr_lines():
    return [f"  s_lshl_b32 s{S_T1}, s{S_W}, 9", f"  s_add_u32 s{S_T1}, s{S_T1}, s{S_WSOFF}", f"  s_add_u32 s{S_T1}, s{S_T1}, 0x20000",
            f"  v_lshlrev_b32 v{V_TMP2}, 3, v{V_LANE}"]
def set_touch(srd_a, srd_b):
    return [f"  s_mov_b64 s[{S_TA}:{S_TA+1}], s[{srd_a}:{srd_a+1}]", f"  s_mov_b64 s[{S_TA+2}:{S_TA+3}], s[{srd_a+2}:{srd_a+3}]",
            f"  s_mov_b64 s[{S_TB}:{S_TB+1}], s[{srd_b}:{srd_b+1}]", f"  s_mov_b64 s[{S_TB+2}:{S_TB+3}], s[{srd_b+2}:{srd_b+3}]"]
def hook_sub():
    t = ["L_hook:",
         f"  s_bitcmp1_b32 s{S_HOOK}, 0", "  s_cbranch_scc0 L_h1",
         f"  s_bitset0_b32 s{S_HOOK}, 0", f"  s_cmp_lg_u32 s{S_W}, 0", "  s_cbranch_scc1 L_h1",
         f"  v_mov_b32 v{V_TMP2}, 1", f"  v_mov_b32 v{V_THR}, 0",
         f"  s_mov_b64 s[{S_MK}:{S_MK+1}], exec", "  s_mov_b64 exec, 1",
         f"  buffer_store_byte v{V_TMP2}, v{V_THR}, s[{S_DBG}:{S_DBG+3}], s{S_PAIR} offen sc1",
         f"  s_mov_b64 exec, s[{S_MK}:{S_MK+1}]",
         "L_h1:",
         f"  s_bitcmp1_b32 s{S_HOOK}, 1", "  s_cbranch_scc0 L_h2",
         f"  s_cmp_eq_u32 s{S_TP}, 1", "  s_cbranch_scc0 L_p1",
         f"  s_lshl_b32 s{S_TAO}, s{S_R}, 15", f"  s_add_u32 s{S_TAO}, s{S_TAO}, s{S_HB}", f"  s_mov_b32 s{S_TBO}, s{S_TAO}",
         f"  s_mov_b32 s{S_TP}, 2", "  s_branch L_h2",
         "L_p1:", f"  s_cmp_eq_u32 s{S_TP}, 2", "  s_cbranch_scc0 L_p3"]
    t += set_touch(S_Q, S_Q)
    t += [f"  s_mov_b32 s{S_TAO}, s{S_Q2OFF}", f"  s_add_u32 s{S_TBO}, s{S_Q2OFF}, 0x8000", f"  s_mov_b32 s{S_TP}, 3", "  s_branch L_h2",
          "L_p3:", f"  s_mov_b32 s{S_TAO}, s{S_OOB}", f"  s_mov_b32 s{S_TBO}, s{S_OOB}", f"  s_bitset0_b32 s{S_HOOK}, 1",
          "L_h2:",
          f"  s_bitcmp1_b32 s{S_HOOK}, 2", "  s_cbranch_scc0 L_h3",
          f"  v_cmp_ne_u32 vcc, 0, v{V_FLAG}", "  s_cbranch_vccnz L_got",
          f"  v_mov_b32 v{V_THR}, 0",
          f"  buffer_load_ubyte v{V_FLAG}, v{V_THR}, s[{S_DBG}:{S_DBG+3}], s{S_PAIR} offen sc1",
          f"  s_setpc_b64 s[{S_LINK}:{S_LINK+1}]",
          "L_got:", "  buffer_inv sc1", f"  s_mov_b32 s{S_STARTED}, 1", f"  s_bitset0_b32 s{S_HOOK}, 2", f"  s_bitset1_b32 s{S_HOOK}, 4", f"  s_mov_b32 s{S_PCH}, 0"]
    t += ml_addr_lines()
    t += [f"  buffer_load_dwordx2 v[{V_ML}:{V_ML+1}], v{V_TMP2}, s[{S_WS}:{S_WS+3}], s{S_T1} offen sc1",
          "L_h3:",
          f"  s_and_b32 s{S_T1}, s{S_HOOK}, 0x18", "  s_cbranch_scc0 L_hret"]
    t += ws_addr_lines()
    nb = NCH // NPS
    for kind in ("st", "ld"):
        if kind == "st": t += [f"  s_bitcmp1_b32 s{S_HOOK}, 3", "  s_cbranch_scc0 L_ld_0"]
        for b in range(nb):
            t.append(f"L_{kind}_{b}:")
            if b < nb - 1: t += [f"  s_cmp_lg_u32 s{S_PCH}, {b}", f"  s_cbranch_scc1 L_{kind}_{b+1}"]
            for g in range(b * NPS, (b + 1) * NPS):
                p, r = ob_reg(g)
                if g % 4 == 0: t.append(f"  s_add_u32 s{S_T1}, s{S_T0}, {hex((g // 4) * 0x1000)}")
                op = "buffer_store_dwordx4" if kind == "st" else "buffer_load_dwordx4"
                t.append(f"  {op} {rs(p, r, 4)}, v{V_WS}, s[{S_WS}:{S_WS+3}], s{S_T1} offen offset:{(g&3)*1024} sc1")
            if b < nb - 1: t.append(f"  s_add_u32 s{S_PCH}, s{S_PCH}, 1")
            elif kind == "st": t += [f"  s_bitset0_b32 s{S_HOOK}, 3", f"  s_bitset1_b32 s{S_HOOK}, 0"]
            else: t.append(f"  s_bitset0_b32 s{S_HOOK}, 4")
            t.append(f"  s_setpc_b64 s[{S_LINK}:{S_LINK+1}]")
    t += ["L_hret:", f"  s_setpc_b64 s[{S_LINK}:{S_LINK+1}]"]
    return t
def pub_check():
    lr = newlab("ret")
    return [salu(f"s_cmp_lg_u32 s{S_HOOK}, 0"), salu(f"s_cbranch_scc0 {lr}"), salu(f"s_call_b64 s[{S_LINK}:{S_LINK+1}], L_hook"), label(lr)]

def dma_k(slot):
    g = []
    for q in range(8):
        grp = []
        if q in (0, 4):
            grp.append(salu(f"s_add_u32 m0, s{S_M0B}, {slot*32768 + (q>>2)*4096}"))
            grp.append(raw("s_nop 0", "nop", 0.5))
        if not NODMA:
            grp.append(I(f"buffer_load_dwordx4 v{V_DK+q}, s[{S_K}:{S_K+3}], s{S_KOFF} offen offset:{(q&3)*1024} lds", "vmem", [f"v{V_DK+q}"], [], opt("dmacost", 3.0)))
        g.append(grp)
    g.append([salu(f"s_add_u32 s{S_KF}, s{S_KF}, 1"), salu(f"s_add_u32 s{S_KOFF}, s{S_KOFF}, 0x8000"),
              salu(f"s_cmp_eq_u32 s{S_KF}, s{S_N1}"), salu(f"s_cselect_b32 s{S_KOFF}, s{S_SEG2}, s{S_KOFF}"),
              salu(f"s_cmp_ge_u32 s{S_KF}, s{S_NT}"), salu(f"s_cselect_b32 s{S_KOFF}, s{S_OOB}, s{S_KOFF}")])
    return g
def dma_v(slot):
    g = []
    for q in range(8):
        grp = []
        if q == 0:
            grp.append(salu(f"s_add_u32 s{S_VOFF2}, s{S_VOFF}, 0x1000"))
        if q in (0, 4):
            grp.append(salu(f"s_add_u32 m0, s{S_M0B}, {65536 + slot*32768 + (q>>2)*4096}"))
            grp.append(raw("s_nop 0", "nop", 0.5))
        so = S_VOFF if q < 4 else S_VOFF2
        if not NODMA:
            grp.append(I(f"buffer_load_dwordx4 v{V_DV+(q&1)}, s[{S_V}:{S_V+3}], s{so} offen offset:{(q&3)*1024} lds", "vmem", [f"v{V_DV+(q&1)}"], [], opt("dmacost", 3.0)))
        g.append(grp)
    g.append([salu(f"s_add_u32 s{S_VF}, s{S_VF}, 1"), salu(f"s_add_u32 s{S_VOFF}, s{S_VOFF}, 0x8000"),
              salu(f"s_cmp_eq_u32 s{S_VF}, s{S_N1}"), salu(f"s_cselect_b32 s{S_VOFF}, s{S_SEG2}, s{S_VOFF}"),
              salu(f"s_cmp_ge_u32 s{S_VF}, s{S_NT}"), salu(f"s_cselect_b32 s{S_VOFF}, s{S_OOB}, s{S_VOFF}")])
    return g

def schedule(mfmas, fixed, stream, pre_issued, head=()):
    n = len(mfmas)
    gc = lambda g: sum(x.cost for x in g)
    gaps = [list(fixed.get(i, [])) for i in range(n)]
    total = sum(gc(g) for gl in gaps for g in gl) + sum(gc(it[0]) for it in stream)
    per = total / n
    cum = 0.0
    si = 0
    for i in range(n):
        cum += sum(gc(g) for g in gaps[i])
        ins = []
        while si < len(stream):
            grp, e, lt = stream[si]
            if e > i: break
            c = gc(grp)
            if cum + c / 2 > per * (i + 1) and not (lt is not None and lt <= i) and i != n - 1: break
            ins.append(grp); cum += c; si += 1
        fx = gaps[i]; merged = []
        while fx or ins:
            if fx: merged.extend(fx.pop(0))
            if ins: merged.extend(ins.pop(0))
        gaps[i] = merged
    assert si == len(stream), "stream left over"
    out = list(head)
    issued = list(pre_issued); done = 0
    WGRP = opt("wgrp", 1)
    for i in range(n):
        m = mfmas[i]
        if m.need:
            need = [d for d in m.need]
            if i % WGRP == 0:
                for k in range(1, WGRP):
                    if i + k < n: need += [d for d in mfmas[i + k].need if d in issued]
            pos = max(issued.index(d) for d in need)
            if pos >= done:
                N = len(issued) - 1 - pos
                out.append(raw(f"s_waitcnt lgkmcnt({min(N,15)})", "wait", 0.5))
                done = len(issued) - min(N, 15)
        out.append(m)
        for x in gaps[i]:
            out.append(x)
            if x.kind == "ds": issued.append(x.dsid)
            if x.kind == "wait0": done = len(issued)
    return out, issued[done:]

def check_hazards(seq, name):
    if opt("novalu", 0) or opt("nods", 0): return
    seq0 = [x for x in seq if x.kind != "label"]
    seq = []
    for x in seq0:
        seq.append(x)
        if x.kind == "nop":
            for _ in range(int(x.text.split()[1])): seq.append(x)
    lastmf = {}; lastvalu = {}; lasttrans = {}; lastsrcc = {}; lastw = {}
    for i, x in enumerate(seq):
        if x.kind == "mfma" and x.text.split()[1].startswith("a["):
            for r in x.rd:
                if 64 <= int(r[1:]) < 128 and r in lastw and not lastw[r].startswith("v_cvt_pk"):
                    print(f"DEP {name}: P reg {r} last written by {lastw[r]} for {x.text}")
        for r in x.wr: lastw[r] = x.text
        isv = x.kind in ("valu", "trans", "perm")
        touch = x.rd | x.wr
        if x.kind == "mfma":
            for r in x.rd:
                if r in lastmf and i - lastmf[r] - 1 < 12: print(f"HAZ {name}: mfma->mfma AB {r} {x.text}")
                if r in lastvalu and i - lastvalu[r] - 1 < 2: print(f"HAZ {name}: valu->mfma {r} {x.text}")
            for r in x.srcc:
                if r in lastvalu and i - lastvalu[r] - 1 < 2: print(f"HAZ {name}: valu->mfma C {r} {x.text}")
            for r in x.wr - x.srcc:
                if r in lastmf and i - lastmf[r] - 1 < 12: print(f"HAZ {name}: mfma WAW {r} {x.text}")
        else:
            for r in touch:
                if r in lastmf and i - lastmf[r] - 1 < 12: print(f"HAZ {name}: mfma->other {r} dist {i-lastmf[r]-1} {x.text}")
            if isv:
                for r in x.wr:
                    if r in lastsrcc and i - lastsrcc[r] - 1 < 7: print(f"HAZ {name}: srcC WAR {r} {x.text}")
            if x.kind == "valu" or x.kind == "perm":
                for r in x.rd:
                    if r in lasttrans and i - lasttrans[r] - 1 < 1: print(f"HAZ {name}: trans->valu {r} {x.text}")
            if x.kind == "perm":
                for r in x.rd:
                    if r in lastvalu and i - lastvalu[r] - 1 < 2: print(f"HAZ {name}: valu->perm {r} {x.text}")
        if x.kind == "mfma":
            for r in x.wr: lastmf[r] = i
            for r in x.srcc: lastsrcc[r] = i
        if isv:
            for r in x.wr:
                lastvalu[r] = i
                if x.kind == "trans": lasttrans[r] = i
                else: lasttrans.pop(r, None)

PRE = [-(k + 1) for k in range(DKD)]

def k_prereads(slot):
    out = []
    for k in range(DKD):
        x = ds_k(k % NKF, k, 0, slot); x.dsid = PRE[k]; out.append(x)
    return out

def spread(groups, g0, step):
    d = {}
    for k, grp in enumerate(groups):
        d.setdefault(g0 + int(round(k * step)), []).append(grp)
    return d
def addfix(fixed, d):
    for k, v in d.items(): fixed.setdefault(k, []).extend(v)

STAMPS = opt("stamps", 0)
def stamp():
    if not STAMPS: return []
    return [raw("s_memtime s[92:93]"), raw("s_waitcnt lgkmcnt(0)", "wait"), raw("s_mov_b32 m0, s94"), raw("s_nop 0"), raw("v_writelane_b32 v60, s92, m0"), raw("s_add_u32 s94, s94, 1")]
def stamp_store():
    if not STAMPS: return []
    return txt(stamp()) + ["  s_memrealtime s[92:93]", "  s_waitcnt lgkmcnt(0)", "  v_writelane_b32 v60, s92, 63", "  s_lshl_b32 s92, s2, 12", f"  s_lshl_b32 s93, s{S_W}, 8", "  s_add_u32 s92, s92, s93", "  s_add_u32 s92, s92, 0x4000000",
            f"  v_lshlrev_b32 v61, 2, v{V_LANE}", f"  buffer_store_dword v60, v61, s[{S_WS}:{S_WS+3}], s92 offen"]
TOUCH = opt("touch", 2)
S_TA = 68; S_TB = 72; S_TAO = 76; S_TBO = 77; S_R = 78; S_TP = 79
LOOK = opt("look", 0)
def touch_groups():
    if not TOUCH or NODMA: return []
    if LOOK:
        return [[salu(f"s_add_u32 s{S_TAO}, s{S_KOFF}, {hex((LOOK-1)*0x8000)}"),
                 I(f"buffer_load_dword v{V_DUMMY}, v{V_TOUCH}, s[{S_K}:{S_K+3}], s{S_TAO} offen", "vmem", [], [], 2.0)],
                [salu(f"s_add_u32 s{S_TBO}, s{S_VOFF}, {hex((LOOK-1)*0x8000)}"),
                 I(f"buffer_load_dword v{V_DUMMY}, v{V_TOUCH}, s[{S_V}:{S_V+3}], s{S_TBO} offen", "vmem", [], [], 2.0)]]
    return [[I(f"buffer_load_dword v{V_DUMMY}, v{V_TOUCH}, s[{S_TA}:{S_TA+3}], s{S_TAO} offen", "vmem", [], [], 2.0)],
            [I(f"buffer_load_dword v{V_DUMMY}, v{V_TOUCH}, s[{S_TB}:{S_TB+3}], s{S_TBO} offen", "vmem", [], [], 2.0)]]
V_QRB = 24; V_QDB = 62; QS = 131072
NTQ = " nt" if opt("ntq", 0) else ""
NTO = {0: "", 1: " nt", 2: " sc1", 3: " sc1 nt", 4: " sc0 sc1 nt", 5: " sc0 sc1"}[opt("nto", 0)]
def q_dma(r, lbase, soff):
    g = []
    for k in range(8):
        t = V_T8 + (k & 3)
        g.append([valu(f"v_xor_b32 v{t}, {hex((4 * (k & 3)) << 4)}, v{V_QDB}", [], [f"v{t}"]),
                  salu(f"s_add_u32 m0, s{S_M0B}, {lbase + k * 1024}"),
                  salu(f"s_add_u32 s{S_T3}, s{soff}, {k * 2048 + r * 256}"),
                  I(f"buffer_load_dwordx4 v{t}, s[{S_Q}:{S_Q+3}], s{S_T3} offen{NTQ} lds", "vmem", [], [], 3.0)])
    return g
def q_reads(r, lbase):
    g = []
    for c in range(8):
        _ds[0] += 1
        t = V_T8 + 4 + (c & 3)
        d = A_Q + 4 * (8 * r + c)
        g.append([valu(f"v_xor_b32 v{t}, {hex((2 * c) << 4)}, v{V_QRB}", [], [f"v{t}"]),
                  I(f"ds_read_b128 {rs('a', d, 4)}, v{t} offset:{lbase - 98304}", "ds", [], R("a", d, 4), 1.0, dsid=_ds[0])])
    return g
def barrier_items():
    return [[raw(f"s_waitcnt vmcnt({2 if (TOUCH and not NODMA) else 0}) lgkmcnt(0)", "wait0", 0.5)], [raw("s_barrier", "bar", 1.0)] + stamp() + pub_check()]

def body(p):
    q = 1 - p
    fixed = {}; mf = []
    kid = {}
    for i in range(32):
        if i < DKD: kid[i] = PRE[i]
        else:
            x = ds_k(i % NKF, i & 15, i >> 4, q); kid[i] = x.dsid
            fixed.setdefault(i - DKD, []).append([x])
    for i in range(32):
        mf.append(mfma_qk(q, i >> 4, i & 15, i % NKF, [kid[i]]))
    for i in range(32):
        kc, db = i >> 3, i & 7
        a = ds_v(i % NVF, kc, db, 0, p); b = ds_v(i % NVF, kc, db, 1, p)
        fixed.setdefault(min(32 + i - DVD, BARG - 1), []).extend([[a], [b]])
        mf.append(mfma_pv(p, kc, db, i % NVF, [a.dsid, b.dsid]))
    dg = dma_k(p) + dma_v(q) + touch_groups()
    addfix(fixed, spread(dg, opt("dma0", 0), opt("dmastep", 2.0)))
    addfix(fixed, {BARG: barrier_items()})
    pr = k_prereads(p)
    for k in range(DKD): fixed.setdefault(64 - DKD + k, []).append([pr[k]])
    stream = []
    for x in echain(p, 1): stream.append(([x], 0, 44))
    stream.append((mask_check(q, 0), 19, None))
    for x in max16(q, 0, True): stream.append(([x], 19, None))
    stream.append((mask_check(q, 1), 35, None))
    for x in max16(q, 1, False): stream.append(([x], 35, None))
    stream.append((rare_check(), 35, None))
    stream.append(([salu(f"s_add_u32 s{S_KT}, s{S_KT}, 1"), salu(f"s_cmp_eq_u32 s{S_KT}, s{S_KTJ}"), salu(f"s_cselect_b32 s{S_KT}, 0, s{S_KT}")], 35, None))
    for x in echain(q, 0): stream.append(([x], 35, None))
    stream.append(([salu(f"s_cmp_eq_u32 s{S_REM}, s{S_POLL}"), salu(f"s_cselect_b32 s{S_T2}, 4, 0"), salu(f"s_or_b32 s{S_HOOK}, s{S_HOOK}, s{S_T2}")], 35, None))
    stream.append(([salu(f"s_sub_u32 s{S_REM}, s{S_REM}, 1")], 35, None))
    if opt("novalu", 0):
        stream = [([x for x in it[0] if x.kind == "label" or (x.kind == "salu" and "s_cmp" not in x.text and "branch" not in x.text)], it[1], it[2]) for it in stream]
        stream = [it for it in stream if it[0]]
    if opt("nods", 0):
        fixed = {g: [grp for grp in gl if grp and grp[0].kind != "ds"] for g, gl in fixed.items()}
        for m in mf: m.need = ()
    seq, left = schedule(mf, fixed, stream, PRE, head=resc_check())
    assert left == PRE or left == [] or opt("nods", 0), (left, PRE)
    return seq

def tail(p, qs=False):
    fixed = {}; mf = []
    head = [raw("s_waitcnt lgkmcnt(0)", "wait", 0.5)] + resc_check()
    pre = []
    for i in range(32):
        kc, db = i >> 3, i & 7
        a = ds_v(i % NVF, kc, db, 0, p); b = ds_v(i % NVF, kc, db, 1, p)
        if i < DVD:
            head.extend([a, b]); pre.extend([a.dsid, b.dsid])
        else:
            fixed.setdefault(min(i - DVD, BARG - 33), []).extend([[a], [b]])
        mf.append(mfma_pv(p, kc, db, i % NVF, [a.dsid, b.dsid]))
    dg = dma_k(p) + dma_v(1 - p)
    if qs:
        addfix(fixed, spread(q_dma(0, QS, S_Q2OFF), 0, 0.5))
        addfix(fixed, spread(dg, 4, 0.5))
        addfix(fixed, {13: [[raw("WAITQ", "wait", 0.5)]]})
        addfix(fixed, spread(q_reads(0, QS), 13, 0.5))
        addfix(fixed, {18: [[raw("s_waitcnt lgkmcnt(0)", "wait0", 0.5)]]})
        addfix(fixed, spread(q_dma(1, QS, S_Q2OFF) + touch_groups(), 18, 0.5))
        addfix(fixed, {BARG - 32: barrier_items()})
        addfix(fixed, spread(q_reads(1, QS), BARG - 32, 0.5))
    else:
        addfix(fixed, spread(dg + touch_groups(), 0, 1))
        addfix(fixed, {BARG - 32: barrier_items()})
    stream = []
    ec = echain(p, 1)
    for k, x in enumerate(ec): stream.append(([x], 0, 13 if k < 33 else 21))
    seq, left = schedule(mf, fixed, stream, pre, head=head)
    if qs:
        n = 0; cnt = None
        for x in seq:
            if x.text == "WAITQ":
                x.text = f"s_waitcnt vmcnt({n - 8})"; break
            if x.kind == "vmem": n += 1
        seq.append(raw("s_waitcnt lgkmcnt(0)", "wait", 0.5))
    return seq

def prologue(p, initial):
    out = []
    out.append(salu(f"s_lshl_b32 s{S_T0}, s{S_QT}, 7"))
    out.append(salu(f"s_lshl_b32 s{S_T1}, s{S_W}, 5"))
    out.append(salu(f"s_add_u32 s{S_T0}, s{S_T0}, s{S_T1}"))
    out.append(valu(f"v_and_b32 v{V_TMP}, 31, v{V_LANE}", [], [f"v{V_TMP}"]))
    out.append(valu(f"v_lshrrev_b32 v{V_TMP2}, 5, v{V_LANE}", [], [f"v{V_TMP2}"]))
    out.append(valu(f"v_lshlrev_b32 v{V_TMP2}, 2, v{V_TMP2}", [], [f"v{V_TMP2}"]))
    out.append(valu(f"v_sub_u32 v{V_TMP}, v{V_TMP}, v{V_TMP2}", [], [f"v{V_TMP}"]))
    out.append(valu(f"v_add_u32 v{V_QROW}, s{S_T0}, v{V_TMP}", [], [f"v{V_QROW}"]))
    for i in range(4): out.append(valu(f"v_mov_b32 v{V_L+i}, 0", [], [f"v{V_L+i}"]))
    out.append(salu(f"s_mov_b32 s{S_RESC}, 0"))
    out.append(salu(f"s_sub_u32 s{S_REM}, s{S_N}, 1"))
    if initial:
        out.append(raw(f"s_waitcnt vmcnt({16 if opt('early', 0) else 0})", "wait"))
        for grp in q_reads(0, QS) + q_reads(1, 98304): out.extend(grp)
        out.append(raw("s_waitcnt lgkmcnt(0)", "wait"))
        out.append(raw("s_barrier", "bar"))
    out += stamp()
    fixed = {}; mf = []; kid = {}; pre = []
    for i in range(32):
        x = ds_k(i % NKF, i & 15, i >> 4, p); kid[i] = x.dsid
        if i < DKD: out.append(x); pre.append(x.dsid)
        else: fixed.setdefault(i - DKD, []).append([x])
        mf.append(mfma_qk(p, i >> 4, i & 15, i % NKF, [kid[i]]))
    stream = [([valu(f"v_accvgpr_write_b32 a{A_O+r}, 0", [], [f"a{A_O+r}"])], 0, None) for r in range(128)]
    if initial and not opt('early', 0): addfix(fixed, spread(dma_k(1) + dma_v(0), 0, 1))
    seq, left = schedule(mf, fixed, stream, pre, head=out)
    seq.append(raw("s_waitcnt vmcnt(0) lgkmcnt(0)", "wait0"))
    seq.append(raw("s_barrier", "bar"))
    seq += stamp()
    if not initial: seq += pub_check()
    seq += k_prereads(1 - p)
    seq.append(raw("s_nop 7", "nop"))
    seq += mask_check(p, 0) + mask_check(p, 1)
    seq += max16(p, 0, True) + max16(p, 1, False) + crosshalf_max()
    seq.append(valu(f"v_mov_b32 v{V_M}, v{V_PM}", [f"v{V_PM}"], [f"v{V_M}"]))
    seq.append(valu(f"v_add_f32 v{V_MT}, {hex(f2u(TRAW))}, v{V_PM}", [f"v{V_PM}"], [f"v{V_MT}"]))
    seq.append(valu(f"v_mul_f32 v{V_MC}, s{S_C}, v{V_PM}", [f"v{V_PM}"], [f"v{V_MC}"]))
    seq.append(salu(f"s_add_u32 s{S_KT}, s{S_KT}, 1"))
    seq += echain(p, 0)
    return seq

def txt(seq):
    return [("" if x.kind == "label" else "  ") + x.text for x in seq]

def lsum_lines():
    return [f"  v_add_f32 v{V_L}, v{V_L}, v{V_L+1}", f"  v_add_f32 v{V_L+2}, v{V_L+2}, v{V_L+3}",
            f"  v_add_f32 v{V_L}, v{V_L}, v{V_L+2}"]
def crosshalf_add(reg):
    return [f"  v_mov_b32 v{V_TMP}, v{reg}", "  s_nop 1", f"  v_permlane32_swap_b32 v{V_TMP}, v{reg}",
            f"  v_add_f32 v{reg}, v{reg}, v{V_TMP}"]

def store_out(merge):
    t = [f"  s_lshl_b32 s{S_T0}, s{S_QT}, 16", f"  s_add_u32 s{S_T0}, s{S_T0}, s{S_HB}",
         f"  s_lshl_b32 s{S_T1}, s{S_W}, 14", f"  s_add_u32 s{S_T0}, s{S_T0}, s{S_T1}",
         f"  v_and_b32 v41, 31, v{V_LANE}", f"  v_lshrrev_b32 v42, 5, v{V_LANE}",
         f"  v_lshlrev_b32 v40, 9, v41", f"  v_lshl_add_u32 v40, v42, 3, v40", f"  v_add_u32 v40, s{S_T1}, v40",
         f"  v_lshlrev_b32 v41, 4, v41"]
    t += [f"  v_and_b32 v43, 31, v{V_LANE}", f"  v_xor_b32 v43, v43, v42", f"  v_lshlrev_b32 v43, 4, v43",
          f"  v_lshl_add_u32 v43, v42, 9, v43", f"  v_add_u32 v43, s{S_T1}, v43"]
    stA = []; stB = []
    for db in range(8):
        for pr in range(2):
            n = db * 2 + pr
            tb = 64 + 32 * (n & 1)
            r0 = 16 * db + 8 * pr
            A = []; B = []
            for i in range(8): A.append(f"  v_accvgpr_read_b32 v{tb+i}, a{A_O+r0+i}")
            ob = []
            if merge:
                p, b = ob_reg(n)
                for i in range(4):
                    A.append(f"  v_lshlrev_b32 v{tb+16+2*i}, 16, v{b+i}")
                    A.append(f"  v_and_b32 v{tb+17+2*i}, 0xffff0000, v{b+i}")
                ob = [tb + 16, tb + 18, tb + 20, tb + 22]
            for gsel in range(2):
                ch = 4 * db + 2 * pr + gsel
                A.append(f"  v_xor_b32 v{tb+12+gsel}, {hex(ch << 4)}, v41")
            for gsel in range(2):
                A.append(f"  v_add_u32 v{tb+12+gsel}, v{tb+12+gsel}, v40")
            for i in range(0, 8, 2):
                B.append(f"  v_pk_mul_f32 v[{tb+i}:{tb+i+1}], v[{tb+i}:{tb+i+1}], v[{V_FA}:{V_FA+1}]")
            if merge:
                for i in range(0, 8, 2):
                    b = ob[i // 2]
                    B.append(f"  v_pk_fma_f32 v[{tb+i}:{tb+i+1}], v[{b}:{b+1}], v[{V_FB}:{V_FB+1}], v[{tb+i}:{tb+i+1}]")
            for i in range(4):
                B.append(f"  v_cvt_pk_bf16_f32 v{tb+8+i}, v{tb+2*i}, v{tb+2*i+1}")
            for gsel in range(2):
                B.append(f"  ds_write_b64 v{tb+12+gsel}, v[{tb+8+2*gsel}:{tb+9+2*gsel}]")
            stA.append(A); stB.append(B)
    t += stA[0]
    for n in range(16):
        X = list(stB[n]); Y = list(stA[n + 1]) if n < 15 else []
        while X or Y:
            if X: t.append(X.pop(0))
            if Y: t.append(Y.pop(0))
    t.append("  s_waitcnt lgkmcnt(0)")
    for k in range(16):
        t.append(f"  v_xor_b32 v{128+k}, {hex((2 * k) << 4)}, v43")
        t.append(f"  ds_read_b128 v[{64+4*k}:{64+4*k+3}], v{128+k} offset:{k*1024}")
    for k in range(16):
        if k % 4 == 0 and k: t.append(f"  s_add_u32 s{S_T0}, s{S_T0}, 0x1000")
        t.append(f"  s_waitcnt lgkmcnt({15-k})")
        t.append(f"  buffer_store_dwordx4 v[{64+4*k}:{64+4*k+3}], v{V_WS}, s[{S_O}:{S_O+3}], s{S_T0} offen offset:{(k&3)*1024}{NTO}")
    return t

def main():
    L = []
    L += ["; Kernarg layout (48 bytes): q, k, v, out, debug, ws pointers (bf16 tensors 1x16x2048x256)",
          "; causal flash attention fwd: 256 WGs x 4 waves, 128 q rows per WG, split-K pairs for causal balance",
          "; @launch grid=(256,1,1) block=(256,1,1) lds=163840",
          '.amdgcn_target "amdgcn-amd-amdhsa--gfx950"', ".text", f".globl {NAME}", ".p2align 8",
          f".type {NAME},@function", f"{NAME}:"]
    a = L.append
    a("  s_cmp_ge_u32 s2, 256"); a("  s_cbranch_scc1 L_end")
    a("  s_load_dwordx4 s[80:83], s[0:1], 0"); a("  s_load_dwordx4 s[84:87], s[0:1], 16"); a("  s_load_dwordx4 s[88:91], s[0:1], 32")
    if STAMPS:
        a("  s_mov_b32 s94, 0"); a("  v_mov_b32 v60, 0"); L.extend(txt(stamp()))
        a("  s_memrealtime s[92:93]"); a("  s_waitcnt lgkmcnt(0)"); a("  v_writelane_b32 v60, s92, 62")
    a(f"  v_and_b32 v{V_LANE}, 63, v0"); a(f"  v_lshrrev_b32 v{V_TMP}, 6, v0"); a("  s_nop 0")
    a(f"  v_readfirstlane_b32 s{S_W}, v{V_TMP}")
    a(f"  s_and_b32 s{S_T0}, s2, 7"); a(f"  s_lshr_b32 s{S_T1}, s2, 3"); a(f"  s_and_b32 s{S_T2}, s{S_T1}, 1")
    a(f"  s_lshl_b32 s{S_T0}, s{S_T0}, 1"); a(f"  s_or_b32 s{S_T0}, s{S_T0}, s{S_T2}")
    a(f"  s_lshr_b32 s{S_T1}, s{S_T1}, 1")
    a(f"  s_lshl_b32 s{S_HB}, s{S_T0}, 20")
    a(f"  s_mov_b32 s{S_C}, {hex(f2u(CSCALE))}")
    a(f"  s_mov_b32 s{S_OOB}, 0x7ff00000")
    a(f"  s_mov_b32 s{S_KF}, 0"); a(f"  s_mov_b32 s{S_VF}, 0")
    a(f"  s_mov_b32 s{S_SEG2}, s{S_HB}")
    a(f"  s_lshl_b32 s{S_M0B}, s{S_W}, 13")
    a(f"  s_mov_b32 s{S_R}, s{S_T1}"); a(f"  s_mov_b32 s{S_TP}, {1 if opt('kvtouch', 1) else 2}")
    a(f"  s_add_u32 s{S_TAO}, s{S_T1}, 16"); a(f"  s_lshl_b32 s{S_TAO}, s{S_TAO}, 15"); a(f"  s_add_u32 s{S_TAO}, s{S_TAO}, s{S_HB}"); a(f"  s_mov_b32 s{S_TBO}, s{S_TAO}")
    if not opt('kvtouch', 1): a(f"  s_mov_b32 s{S_TAO}, s{S_OOB}"); a(f"  s_mov_b32 s{S_TBO}, s{S_OOB}")
    dl = [int(c) for c in opt("delta", "22100000")]
    dtab = sum(d << (2 * t) for t, d in enumerate(dl))
    a(f"  s_sub_u32 s{S_T2}, 15, s{S_T1}"); a(f"  s_min_u32 s{S_TSMALL}, s{S_T1}, s{S_T2}")
    a(f"  s_lshl_b32 s{S_T2}, s{S_TSMALL}, 1"); a(f"  s_lshr_b32 s{S_T3}, {hex(dtab)}, s{S_T2}"); a(f"  s_and_b32 s{S_T3}, s{S_T3}, 3")
    a(f"  s_sub_u32 s{S_N1}, 15, s{S_T2}"); a(f"  s_sub_u32 s{S_N1}, s{S_N1}, s{S_T3}")
    a(f"  s_cmp_lt_u32 s{S_T1}, 8"); a("  s_cbranch_scc0 L_typeA")
    a(f"  s_sub_u32 s{S_QT}, 15, s{S_T1}")
    a(f"  s_sub_u32 s{S_NT}, 17, s{S_T3}")
    a(f"  s_mov_b32 s{S_N}, s{S_N1}"); a(f"  s_mov_b32 s{S_KT}, 0"); a(f"  s_mov_b32 s{S_MSK}, 1000"); a(f"  s_mov_b32 s{S_MODE}, 0")
    a(f"  s_lshl_b32 s{S_Q2OFF}, s{S_T1}, 16"); a(f"  s_add_u32 s{S_Q2OFF}, s{S_Q2OFF}, s{S_HB}")
    a(f"  s_mov_b32 s{S_HOOK}, {0 if LOOK else 2}"); a(f"  s_mov_b32 s{S_KTJ}, 100000"); a(f"  s_mov_b32 s{S_POLL}, 100000")
    a("  s_branch L_common")
    a("L_typeA:")
    a(f"  s_mov_b32 s{S_QT}, s{S_T1}")
    a(f"  s_add_u32 s{S_NT}, 17, s{S_T3}")
    a(f"  s_mov_b32 s{S_N}, s{S_NT}"); a(f"  s_lshl_b32 s{S_MSK}, s{S_T1}, 1"); a(f"  s_mov_b32 s{S_MODE}, 2")
    if opt("rot", 1):
        a(f"  s_lshl_b32 s{S_SEG2}, s{S_N1}, 15"); a(f"  s_add_u32 s{S_SEG2}, s{S_SEG2}, s{S_HB}")
        a(f"  s_mov_b32 s{S_KT}, 15"); a(f"  s_add_u32 s{S_KTJ}, s{S_MSK}, 2"); a(f"  s_sub_u32 s{S_N1}, s{S_KTJ}, 15")
    else:
        a(f"  s_mov_b32 s{S_KT}, s{S_N1}"); a(f"  s_mov_b32 s{S_N1}, s{S_NT}"); a(f"  s_mov_b32 s{S_KTJ}, 100000")
    a(f"  s_mov_b32 s{S_Q2OFF}, s{S_OOB}")
    a(f"  s_mov_b32 s{S_HOOK}, {0 if LOOK else 2}")
    a(f"  s_lshl_b32 s{S_POLL}, s{S_TSMALL}, 1"); a(f"  s_add_u32 s{S_POLL}, s{S_POLL}, {opt('pollat', 2)}"); a(f"  s_add_u32 s{S_POLL}, s{S_POLL}, s{S_T3}"); a(f"  s_add_u32 s{S_POLL}, s{S_POLL}, s{S_T3}")
    a("L_common:")
    a(f"  s_mov_b32 s{S_STARTED}, 0")
    a(f"  s_lshl_b32 s{S_PAIR}, s{S_T0}, 3"); a(f"  s_add_u32 s{S_PAIR}, s{S_PAIR}, s{S_TSMALL}")
    a(f"  s_mul_i32 s{S_WSOFF}, s{S_PAIR}, 0x21000")
    a(f"  s_lshl_b32 s{S_KOFF}, s{S_KT}, 15"); a(f"  s_add_u32 s{S_KOFF}, s{S_KOFF}, s{S_HB}"); a(f"  s_mov_b32 s{S_VOFF}, s{S_KOFF}")
    a(f"  s_lshl_b32 s{S_QOFF}, s{S_QT}, 16"); a(f"  s_add_u32 s{S_QOFF}, s{S_QOFF}, s{S_HB}")
    l = V_LANE; t0 = V_T8; t1 = V_T8 + 1; t2 = V_T8 + 2; t3 = V_T8 + 3; t4 = V_T8 + 4
    a(f"  v_and_b32 v{t0}, 31, v{l}")
    a(f"  v_lshrrev_b32 v{t1}, 5, v{l}")
    a(f"  v_and_b32 v{t2}, 15, v{l}")
    a(f"  v_xor_b32 v{t4}, v{t0}, v{t1}")
    a(f"  v_lshlrev_b32 v{t4}, 4, v{t4}"); a(f"  v_lshl_add_u32 v{t4}, v{t1}, 9, v{t4}"); a(f"  v_add_u32 v{t4}, s{S_M0B}, v{t4}")
    for q in range(8):
        a(f"  v_xor_b32 v{V_DK+q}, {hex((2*q) << 4 | (q>>2)*4096)}, v{t4}")
    a(f"  v_lshrrev_b32 v{t3}, 4, v{l}"); a(f"  v_xor_b32 v{V_QDB}, v{t2}, v{t3}"); a(f"  v_lshlrev_b32 v{V_QDB}, 4, v{V_QDB}")
    a(f"  v_lshl_add_u32 v{V_QDB}, v{t3}, 9, v{V_QDB}"); a(f"  s_lshl_b32 s{S_T1}, s{S_W}, 14"); a(f"  v_add_u32 v{V_QDB}, s{S_T1}, v{V_QDB}")
    a(f"  v_xor_b32 v{V_QRB}, v{t1}, v{t2}"); a(f"  v_lshlrev_b32 v{V_QRB}, 4, v{V_QRB}"); a(f"  v_lshl_add_u32 v{V_QRB}, v{t0}, 8, v{V_QRB}")
    a(f"  s_add_u32 s{S_T1}, s{S_M0B}, 98304"); a(f"  v_add_u32 v{V_QRB}, s{S_T1}, v{V_QRB}")
    L.extend(txt(stamp()))
    a("  s_waitcnt lgkmcnt(0)")
    L.extend(txt(stamp()))
    for (srd, lo, n) in ((S_K, 82, 0x1000000), (S_Q, 80, 0x1000000)):
        a(f"  s_mov_b32 s{srd}, s{lo}"); a(f"  s_and_b32 s{srd+1}, s{lo+1}, 0xffff"); a(f"  s_mov_b32 s{srd+2}, {hex(n)}"); a(f"  s_mov_b32 s{srd+3}, 0x00020000")
    for grp in dma_k(0): L += txt(grp)
    KEEP = [f"  v_mov_b32 v{128+i}, v{V_T8+i}" for i in range(3)]
    L += KEEP
    for grp in q_dma(0, QS, S_QOFF) + q_dma(1, 98304, S_QOFF): L += txt(grp)
    L += [f"  v_mov_b32 v{V_T8+i}, v{128+i}" for i in range(3)]
    L.extend(txt(stamp()))
    for (srd, lo, n) in ((S_V, 84, 0x1000000), (S_O, 86, 0x1000000), (S_DBG, 88, 256), (S_WS, 90, 0x10000000)):
        a(f"  s_mov_b32 s{srd}, s{lo}"); a(f"  s_and_b32 s{srd+1}, s{lo+1}, 0xffff"); a(f"  s_mov_b32 s{srd+2}, {hex(n)}"); a(f"  s_mov_b32 s{srd+3}, 0x00020000")
    L += set_touch(S_K, S_V)
    a(f"  v_xor_b32 v{t3}, v{t1}, v{t2}"); a(f"  v_lshlrev_b32 v{t3}, 4, v{t3}"); a(f"  v_lshl_add_u32 v{t3}, v{t0}, 9, v{t3}")
    for c7 in range(8):
        a(f"  v_xor_b32 v{V_KA+c7}, {hex((2*c7) << 4)}, v{t3}")
    a(f"  v_lshlrev_b32 v{t3}, 2, v{t1}"); a(f"  v_xor_b32 v{t3}, v{t3}, v{t0}")
    a(f"  v_lshlrev_b32 v{t3}, 4, v{t3}"); a(f"  v_lshl_add_u32 v{t3}, v{t1}, 9, v{t3}"); a(f"  v_add_u32 v{V_DV}, s{S_M0B}, v{t3}")
    a(f"  v_xor_b32 v{V_DV+1}, 0x80, v{V_DV}")
    a(f"  v_lshrrev_b32 v{t3}, 2, v{t2}")
    a(f"  v_lshl_add_u32 v{t4}, v{t1}, 2, v{t3}")
    a(f"  v_lshlrev_b32 v{t4}, 9, v{t4}")
    a(f"  v_bfe_u32 v{t0}, v{l}, 4, 1"); a(f"  v_lshl_add_u32 v{t4}, v{t0}, 5, v{t4}")
    a(f"  v_and_b32 v{t0}, 3, v{l}"); a(f"  v_lshl_add_u32 v{t4}, v{t0}, 3, v{t4}")
    a(f"  v_add_u32 v{t4}, 0x10000, v{t4}")
    for dbl in range(4):
        a(f"  v_xor_b32 v{t0}, {dbl}, v{t3}"); a(f"  v_lshl_add_u32 v{V_VA+dbl}, v{t0}, 6, v{t4}")
    a(f"  v_lshlrev_b32 v{V_WS}, 4, v{l}")
    a(f"  v_lshlrev_b32 v{V_TOUCH}, 7, v0")
    a(f"  v_mov_b32 v{V_NINF}, 0xff800000")
    a(f"  v_mov_b32 v{V_FLAG}, 0")
    if opt('early', 0):
        for grp in dma_k(1) + dma_v(0): L += txt(grp)
    if opt("nods", 0):
        for r in range(128, 200): a(f"  v_mov_b32 v{r}, 0")
    pro_i = prologue(0, True); check_hazards(pro_i, "pro_i")
    L += txt(pro_i)
    a("L_after_pro0:")
    a(f"  s_cmp_eq_u32 s{S_REM}, 0"); a("  s_cbranch_scc1 L_tail0")
    b0 = body(0); b1 = body(1)
    check_hazards(pro_i + b0 + b1 + b0, "loop")
    if opt("align", 0): a("  s_branch L_body0"); a(f".p2align {opt('align', 0)}")
    a("L_body0:"); L += txt(b0)
    a("L_after_pro1:")
    a(f"  s_cmp_eq_u32 s{S_REM}, 0"); a("  s_cbranch_scc1 L_tail1")
    a("L_body1:"); L += txt(b1)
    a(f"  s_cmp_lg_u32 s{S_REM}, 0"); a("  s_cbranch_scc1 L_body0")
    t0s = tail(0); t1s = tail(1)
    check_hazards(b1 + t0s, "tail0"); check_hazards(b0 + t1s, "tail1")
    a("L_tail0:"); a(f"  s_cmp_eq_u32 s{S_MODE}, 0"); a("  s_cbranch_scc1 L_tailq0"); L += txt(t0s); a("  s_branch L_epi")
    tq0 = tail(0, True); tq1 = tail(1, True)
    check_hazards(b1 + tq0, "tailq0"); check_hazards(b0 + tq1, "tailq1")
    a("L_tailq0:"); L += txt(tq0); a("  s_branch L_epi")
    a("L_tailq1:"); L += txt(tq1); a("  s_branch L_epi")
    a("L_tail1:"); a(f"  s_cmp_eq_u32 s{S_MODE}, 0"); a("  s_cbranch_scc1 L_tailq1"); L += txt(t1s)
    a("L_epi:")
    L.extend(txt(stamp()))
    a("  s_nop 15"); a("  s_nop 15")
    L += lsum_lines()
    a(f"  s_cmp_eq_u32 s{S_MODE}, 1"); a("  s_cbranch_scc1 L_final")
    a(f"  s_cmp_eq_u32 s{S_MODE}, 2"); a("  s_cbranch_scc1 L_merge")
    L += ml_addr_lines()
    a(f"  v_mov_b32 v{V_T8}, v{V_M}"); a(f"  v_mov_b32 v{V_T8+1}, v{V_L}")
    a(f"  buffer_store_dwordx2 v[{V_T8}:{V_T8+1}], v{V_TMP2}, s[{S_WS}:{S_WS+3}], s{S_T1} offen sc1")
    for g in range(NCH):
        p, r = ob_reg(g)
        tb = 64 + 8 * (g & 3)
        for i in range(8): a(f"  v_accvgpr_read_b32 v{tb+i}, a{A_O+8*g+i}")
        if g:
            pp, pr_ = ob_reg(g - 1); ptb = 64 + 8 * ((g - 1) & 3)
            for i in range(4): a(f"  v_cvt_pk_bf16_f32 v{pr_+i}, v{ptb+2*i}, v{ptb+2*i+1}")
    pp, pr_ = ob_reg(NCH - 1); ptb = 64 + 8 * ((NCH - 1) & 3)
    for i in range(4): a(f"  v_cvt_pk_bf16_f32 v{pr_+i}, v{ptb+2*i}, v{ptb+2*i+1}")
    a(f"  s_cmp_gt_u32 s{S_TSMALL}, {opt('tdirect', 2)}"); a("  s_cbranch_scc1 L_copy")
    L += ws_addr_lines()
    for g in range(NCH):
        p, r = ob_reg(g)
        if g and g % 4 == 0: a(f"  s_add_u32 s{S_T0}, s{S_T0}, 0x1000")
        a(f"  buffer_store_dwordx4 v[{r}:{r+3}], v{V_WS}, s[{S_WS}:{S_WS+3}], s{S_T0} offen offset:{(g&3)*1024} sc1")
    a(f"  s_bitset1_b32 s{S_HOOK}, 0")
    a("  s_branch L_sw2")
    a("L_copy:")
    a(f"  s_bitset1_b32 s{S_HOOK}, 3"); a(f"  s_mov_b32 s{S_PCH}, 0")
    a("L_sw2:")
    a(f"  s_mov_b32 s{S_QT}, s{S_TSMALL}"); a(f"  s_lshl_b32 s{S_MSK}, s{S_TSMALL}, 1"); a(f"  s_add_u32 s{S_N}, s{S_MSK}, 2")
    a(f"  s_mov_b32 s{S_KT}, 0"); a(f"  s_mov_b32 s{S_MODE}, 1")
    a(f"  s_and_b32 s{S_T0}, s{S_N1}, 1"); a(f"  s_cmp_eq_u32 s{S_T0}, 1"); a("  s_cbranch_scc1 L_pro1")
    p0 = prologue(0, False); check_hazards(p0 + b0, "pro0")
    L += txt(p0); a("  s_branch L_after_pro0")
    a("L_pro1:")
    p1 = prologue(1, False); check_hazards(p1 + b1, "pro1")
    L += txt(p1); a("  s_branch L_after_pro1")
    a("L_final:")
    a(f"  s_and_b32 s{S_HOOK}, s{S_HOOK}, 9"); a("  s_cbranch_scc0 L_final2")
    a("L_flushB:")
    a(f"  s_bitcmp1_b32 s{S_HOOK}, 3"); a("  s_cbranch_scc0 L_flushB2")
    a(f"  s_call_b64 s[{S_LINK}:{S_LINK+1}], L_hook"); a(f"  s_bitset0_b32 s{S_HOOK}, 0"); a("  s_branch L_flushB")
    a("L_flushB2:")
    a("  s_waitcnt vmcnt(0)"); a("  s_barrier"); a(f"  s_mov_b32 s{S_HOOK}, 1"); a(f"  s_call_b64 s[{S_LINK}:{S_LINK+1}], L_hook")
    a("L_final2:")
    L += crosshalf_add(V_L)
    a(f"  v_rcp_f32 v{V_FA}, v{V_L}"); a("  s_nop 0"); a(f"  v_mov_b32 v{V_FA+1}, v{V_FA}")
    if opt("twice", 0):
        a("  s_mov_b32 s95, 2"); a("L_twice:"); L.extend(txt(stamp()))
    L += store_out(False)
    if opt("twice", 0):
        a("  s_sub_u32 s95, s95, 1"); a("  s_cmp_lg_u32 s95, 0"); a("  s_cbranch_scc1 L_twice")
    L += stamp_store()
    a("  s_endpgm")
    a("L_merge:")
    a(f"  s_cmp_eq_u32 s{S_STARTED}, 0"); a(f"  s_cselect_b32 s{S_T2}, 4, 0"); a(f"  s_or_b32 s{S_HOOK}, s{S_HOOK}, s{S_T2}")
    a(f"  s_mov_b32 s{S_T2}, 0x400000")
    a("L_flushA:")
    a(f"  s_and_b32 s{S_HOOK}, s{S_HOOK}, 0x14"); a("  s_cbranch_scc0 L_have")
    a("  s_waitcnt vmcnt(0)")
    a(f"  s_call_b64 s[{S_LINK}:{S_LINK+1}], L_hook")
    a(f"  s_sub_u32 s{S_T2}, s{S_T2}, 1"); a(f"  s_cmp_lg_u32 s{S_T2}, 0"); a("  s_cbranch_scc1 L_flushA")
    a("L_have:")
    L.extend(txt(stamp()))
    a("  s_waitcnt vmcnt(0)")
    a(f"  v_max_f32 v{V_TMP}, v{V_M}, v{V_ML}")
    a(f"  v_sub_f32 v{V_M}, v{V_M}, v{V_TMP}"); a(f"  v_sub_f32 v{V_ML}, v{V_ML}, v{V_TMP}")
    a(f"  v_mul_f32 v{V_M}, s{S_C}, v{V_M}"); a(f"  v_mul_f32 v{V_ML}, s{S_C}, v{V_ML}")
    a(f"  v_exp_f32 v{V_M}, v{V_M}"); a(f"  v_exp_f32 v{V_ML}, v{V_ML}"); a("  s_nop 0")
    a(f"  v_mul_f32 v{V_L}, v{V_L}, v{V_M}"); a(f"  v_fma_f32 v{V_L}, v{V_ML+1}, v{V_ML}, v{V_L}")
    L += crosshalf_add(V_L)
    a(f"  v_rcp_f32 v{V_L}, v{V_L}"); a("  s_nop 0")
    a(f"  v_mul_f32 v{V_FA}, v{V_M}, v{V_L}"); a(f"  v_mul_f32 v{V_FB}, v{V_ML}, v{V_L}")
    a(f"  v_mov_b32 v{V_FA+1}, v{V_FA}"); a(f"  v_mov_b32 v{V_FB+1}, v{V_FB}")
    L += store_out(True)
    L += stamp_store()
    a("L_end:")
    a("  s_endpgm")
    L += hook_sub()
    L += OOL
    L += ['.section .rodata,"a"', ".p2align 6", f".amdhsa_kernel {NAME}",
          "  .amdhsa_next_free_vgpr 512", "  .amdhsa_next_free_sgpr 102", "  .amdhsa_accum_offset 256",
          "  .amdhsa_group_segment_fixed_size 0", "  .amdhsa_kernarg_size 48", "  .amdhsa_user_sgpr_count 2",
          "  .amdhsa_user_sgpr_kernarg_segment_ptr 1", "  .amdhsa_system_sgpr_workgroup_id_x 1", ".end_amdhsa_kernel"]
    open(OUT, "w").write("\n".join(L) + "\n")

main()
```
